```python
import torch

def _softmax(x, axis=-1):
    return torch.softmax(x, dim=axis)
def _gelu(x):
    return torch.nn.functional.gelu(x, approximate="tanh")
def _silu(x):
    return torch.nn.functional.silu(x)
def _sigmoid(x):
    return torch.sigmoid(x)
def _layernorm(x, axis=-1, eps=1e-5):
    m = x.mean(dim=axis, keepdim=True)
    v = x.var(dim=axis, keepdim=True, unbiased=False)
    return (x - m) / torch.sqrt(v + eps)
def _scatter_add(tgt, idx, src, axis=0):
    return tgt.clone().index_add_(axis, idx, src)
def _segment_sum(src, seg, n):
    out = torch.zeros((n,) + src.shape[1:], dtype=src.dtype)
    return out.index_add_(0, seg, src)
def _pad(x, pw):
    flat = tuple(v for pair in reversed(pw) for v in pair)
    return torch.nn.functional.pad(x, flat)

kernel_name = 'gated_mix__ssm_conv_s4__glu_gated_bilinear__prompt'

def setup_inputs():

    _w = (lambda a: (lambda t: t.to(torch.bfloat16) if t.is_floating_point() else t)(torch.as_tensor(a)))
    def _A_setup():
        B, L, D, N = 1, 2048, 640, 192
        A_re = -(lambda _x: torch.exp(torch.as_tensor(_x)))((lambda *s: torch.randn(*s, dtype=torch.bfloat16) * 6.4)(D, N))
        A_im = torch.pi * (lambda *s: torch.randn(*s, dtype=torch.bfloat16) * 0.05)(D, N)
        B_re = (lambda *s: torch.randn(*s, dtype=torch.bfloat16) * 0.05)(D, N)
        B_im = (lambda *s: torch.randn(*s, dtype=torch.bfloat16) * 0.05)(D, N)
        C_re = (lambda *s: torch.randn(*s, dtype=torch.bfloat16) * 0.05)(D, N)
        C_im = (lambda *s: torch.randn(*s, dtype=torch.bfloat16) * 0.05)(D, N)
        log_dt = (lambda *s: torch.randn(*s, dtype=torch.bfloat16) * 0.05)(D) * 0.5 - 4.0
        Dskip = (lambda *s: torch.randn(*s, dtype=torch.bfloat16) * 0.05)(D)
        return {
            "u": _w((lambda *s: torch.randn(*s, dtype=torch.bfloat16) * 0.05)(B, L, D)),
            "A_re": _w(A_re),
            "A_im": _w(A_im),
            "B_re": _w(B_re),
            "B_im": _w(B_im),
            "C_re": _w(C_re),
            "C_im": _w(C_im),
            "log_dt": _w(log_dt),
            "Dskip": _w(Dskip),
        }
    _A_in = _A_setup()

    def _B_setup():
        B, S, D, F = 1, 2048, 640, 1536
        return {
            "x": _w((lambda *s: torch.randn(*s, dtype=torch.bfloat16) * 0.05)(B, S, D)),
            "w_gate": _w((lambda *s: torch.randn(*s, dtype=torch.bfloat16) * 0.8)(D, F) * (D ** -0.5)),
            "w_up": _w((lambda *s: torch.randn(*s, dtype=torch.bfloat16) * 0.8)(D, F) * (D ** -0.5)),
            "w_down": _w((lambda *s: torch.randn(*s, dtype=torch.bfloat16) * 0.8)(F, D) * (F ** -0.5)),
        }
    _B_in = _B_setup()

    return {
        "A_u": _A_in["u"],
        "A_A_re": _A_in["A_re"],
        "A_A_im": _A_in["A_im"],
        "A_B_re": _A_in["B_re"],
        "A_B_im": _A_in["B_im"],
        "A_C_re": _A_in["C_re"],
        "A_C_im": _A_in["C_im"],
        "A_log_dt": _A_in["log_dt"],
        "A_Dskip": _A_in["Dskip"],
        "B_x": _B_in["x"],
        "B_w_gate": _B_in["w_gate"],
        "B_w_up": _B_in["w_up"],
        "B_w_down": _B_in["w_down"],
        "gate_w": _w((lambda *s: torch.randn(*s, dtype=torch.bfloat16) * 0.05)(640) * 16.0),
    }

def reference(A_u, A_A_re, A_A_im, A_B_re, A_B_im, A_C_re, A_C_im, A_log_dt, A_Dskip, B_x, B_w_gate, B_w_up, B_w_down, gate_w):
    def _A_ref(u, A_re, A_im, B_re, B_im, C_re, C_im, log_dt, Dskip):
        Bsz, L, D = u.shape
        dt = torch.exp(log_dt)[:, None]
        A = A_re + 1j * A_im
        Bc = B_re + 1j * B_im
        Cc = C_re + 1j * C_im
        logdA = dt * A
        dB = dt * Bc
        l = (lambda x, dt: x.to(dt))(torch.arange(L), A_re.dtype)
        P = torch.exp(logdA[:, :, None] * l[None, None, :])
        K = torch.einsum("dn,dnl,dn->dl", Cc, P, dB).real
        L2 = 2 * L
        Kp = _pad(K, ((0, 0), (0, L)))
        up = (lambda x, *d: x.permute(*d))(u, 0, 2, 1)
        up = _pad(up, ((0, 0), (0, 0), (0, L)))
        Kf = (lambda x, axes=(-2,-1): torch.fft.rfft2(x.float(), dim=axes))(Kp[:, None, :], axes=(-2, -1))
        Uf = (lambda x, axes=(-2,-1): torch.fft.rfft2(x.float(), dim=axes))(up[:, :, None, :], axes=(-2, -1))
        Yf = Uf * Kf[None, :, :, :]
        y = (lambda x, s, axes=(-2,-1): torch.fft.irfft2(x, s=s, dim=axes).to(torch.bfloat16))(Yf, (1, L2), axes=(-2, -1))[:, :, 0, :L]
        y = (lambda x, *d: x.permute(*d))(y, 0, 2, 1) + u * Dskip[None, None, :]
        return y

    def _B_ref(x, w_gate, w_up, w_down):
        g = torch.einsum("bsd,df->bsf", x, w_gate)
        u = torch.einsum("bsd,df->bsf", x, w_up)
        h = g * u
        return torch.einsum("bsf,fd->bsd", h, w_down)

    x = A_u
    g = _sigmoid((x * gate_w).sum(-1, keepdims=True))
    a = _A_ref(x, A_A_re, A_A_im, A_B_re, A_B_im, A_C_re, A_C_im, A_log_dt, A_Dskip)
    b = _B_ref(x, B_w_gate, B_w_up, B_w_down)
    return g * a + (1 - g) * b
```

```python
import re
class G:
    def __init__(s):
        s.L=[]; s.vm=[]; s.lg=[]
    def __call__(s,t):
        for x in t.split('\n'):
            x=x.strip()
            if x: s.L.append(x)
    def lab(s,n): s.L.append(n+':')
    def vmem(s,t,tag=None): s.L.append(t); s.vm.append(tag); assert len(s.vm)<=63,('vmcnt overflow',len(s.vm))
    def lds(s,t,tag=None): s.L.append(t); s.lg.append(tag)
    def _n(s,q,tag):
        idx=[i for i,x in enumerate(q) if x==tag]
        if not idx: return None
        return len(q)-1-idx[-1]
    def wait_vm(s,tag=None):
        n=0 if tag is None else s._n(s.vm,tag)
        if n is None: return
        s.L.append('s_waitcnt vmcnt(%d)'%n); s.vm=s.vm[len(s.vm)-n:] if n else []
    def wait_lg(s,tag=None):
        n=0 if tag is None else s._n(s.lg,tag)
        if n is None: return
        n=min(n,15)
        s.L.append('s_waitcnt lgkmcnt(%d)'%n); s.lg=s.lg[len(s.lg)-n:] if n else []
    def reset(s): s.vm=[]; s.lg=[]
    def text(s): return '\n'.join(('' if x.endswith(':') else '    ')+x for x in s.L)+'\n'
def v(a,n=1): return 'v%d'%a if n==1 else 'v[%d:%d]'%(a,a+n-1)
def s_(a,n=1): return 's%d'%a if n==1 else 's[%d:%d]'%(a,a+n-1)

REG=re.compile(r'(?<![a-z_0-9])([vs])(?:(\d+)|\[(\d+):(\d+)\])(?![a-z_0-9])')
def regs(op):
    out=set()
    for m in REG.finditer(op):
        if m.group(2) is not None: out.add((m.group(1),int(m.group(2))))
        else:
            for i in range(int(m.group(3)),int(m.group(4))+1): out.add((m.group(1),i))
    if 'vcc' in op: out.add(('s','vcc'))
    if re.search(r'\bm0\b',op): out.add(('s','m0'))
    if 'exec' in op: out.add(('s','exec'))
    return out
TRANS=('v_exp_f32','v_log_f32','v_rcp_f32','v_rsq_f32','v_sqrt_f32','v_sin_f32','v_cos_f32')
def parse(ins):
    p=ins.split(None,1); op=p[0]; ops=[x.strip() for x in p[1].split(',')] if len(p)>1 else []
    d=dict(op=op,w=set(),r=set(),kind='other',ws=1)
    allr=[regs(x) for x in ops]
    if op=='s_nop': d['ws']=int(ops[0])+1; return d
    if op.startswith('v_mfma'):
        d['kind']='mfma'; d['w']=allr[0]; d['ab']=allr[1]|allr[2]; d['c']=allr[3]; d['r']=d['ab']|d['c']
        d['passes']=8 if '32x32' in op else 4
    elif op.startswith('v_'):
        d['kind']='valu'; d['w']=set(allr[0]); d['r']=set().union(*allr[1:]) if len(allr)>1 else set()
        if op.startswith(('v_fmac','v_dot2c','v_permlane')) : d['r']|=allr[0]
        if op.startswith('v_permlane'): d['w']|=allr[1]
        if '_co_' in op: d['w']|=allr[1]
        d['trans']=op.startswith(TRANS); d['dpp']='dpp' in op
    elif op.startswith(('buffer_','global_')):
        d['kind']='vmem'
        if 'load' in op and ' lds' not in ins and 'load_lds' not in op: d['w']=allr[0]; d['r']=set().union(*allr[1:])
        else: d['r']=set().union(*allr)
        if ' lds' in ins or 'load_lds' in op: d['r'].add(('s','m0')); d['dma']=True
        if 'store' in op and ('x4' in op or 'x3' in op): d['wide']=allr[0] if op.startswith('buffer') else allr[1]
    elif op.startswith('ds_'):
        d['kind']='ds'
        if 'read' in op or 'rtn' in op or 'permute' in op: d['w']=allr[0]; d['r']=set().union(*allr[1:])
        else: d['r']=set().union(*allr)
    elif op.startswith('s_'):
        d['kind']='salu'
        if not op.startswith(('s_cmp','s_cbranch','s_branch','s_waitcnt','s_barrier','s_endpgm','s_setprio','s_sleep','s_bitcmp')) and allr:
            d['w']=allr[0]; d['r']=set().union(*allr[1:]) if len(allr)>1 else set()
        else: d['r']=set().union(*allr) if allr else set()
    return d
def need(a,b):
    n=0
    vw={x for x in a['w'] if x[0]=='v'}; sw={x for x in a['w'] if x[0]=='s'}
    if a['kind']=='valu':
        if b['kind']=='mfma' and vw&b['r']: n=max(n,2)
        if b['kind']=='valu':
            if a.get('trans') and not b.get('trans') and vw&b['r']: n=max(n,1)
            if b.get('dpp') and vw&b['r']: n=max(n,2)
            if b['op'].startswith('v_permlane') and vw&b['r']: n=max(n,2)
            if b['op'].startswith(('v_readlane','v_readfirstlane')) and vw&b['r']: n=max(n,1)
            if sw&b['r']: n=max(n,2)
            if a['op'].startswith('v_dot') and vw&(b['r']|b['w']) and a['op']!=b['op']: n=max(n,3)
        if b['kind']=='vmem' and sw&b['r']: n=max(n,5)
        if b['kind']=='salu' and sw&b['r']: n=max(n,1)
    if a['kind']=='salu' and ('s','m0') in a['w'] and b.get('dma'): n=max(n,1)
    if a['kind']=='mfma':
        p=a['passes']
        if b['kind']=='mfma':
            if a['w']&b['ab']: n=max(n,{4:8,8:12}[p])
            if a['w']&b['c'] and (a['w']!=b['c'] or p!=b['passes']): n=max(n,{4:6,8:10}[p])
            if a['w']&b['w'] and not (a['w']&b['c']): n=max(n,{4:8,8:12}[p])
        elif b['kind'] in('valu','vmem','ds'):
            if a['w']&(b['r']|b['w']): n=max(n,{4:8,8:12}[p])
            if b['kind']=='valu' and a['c']&b['w']: n=max(n,{4:3,8:7}[p])
    if a.get('wide') and a['wide']&b['w']: n=max(n,2)
    return n
def check(lines):
    ins=[]; labs={}
    for x in lines:
        if x.endswith(':'): labs[x[:-1]]=len(ins)
        elif x.startswith('.') or x.startswith(';'): continue
        else: ins.append(x)
    P=[parse(x) for x in ins]; bad=[]
    def succ(i):
        op=P[i]['op']
        if op=='s_endpgm': return []
        if op=='s_branch': return [labs[ins[i].split()[1]]]
        if op.startswith('s_cbranch'): return [i+1,labs[ins[i].split()[1]]]
        return [i+1]
    for i,a in enumerate(P):
        if a['kind'] not in('valu','mfma','vmem','salu'): continue
        if a['kind']=='salu' and ('s','m0') not in a['w']: continue
        if a['kind']=='vmem' and not a.get('wide'): continue
        lim=12 if a['kind']=='mfma' else 5
        st=[(j,0) for j in succ(i)]; seen=set()
        while st:
            j,dist=st.pop()
            if j>=len(P) or dist>=lim or (j,dist) in seen: continue
            seen.add((j,dist))
            n=need(a,P[j])
            if n>dist: bad.append((ins[i],ins[j],n,dist))
            for k in succ(j): st.append((k,dist+P[j]['ws']))
    return bad
```

```python
from asmlib import G, v, s_, check
NAME='gated_mix__ssm_conv_s4__glu_gated_bilinear__prompt'
WS_H=0; WS_UT=0x600000+128; ROWS=4224; WS_YT=0x900000; WS_G=0xC00000; WS_FL=0xC10000
FL_UT=WS_FL; FL_H=WS_FL+10*128; FL_Y=WS_FL+26*128; NFL=66
WS_ST=0xC20000; WS_END=0xD00000
STAGE=40992; WOFF=16384; UPOFF=12320
L_TMP=3*STAGE
L_GW=L_TMP+4352
L_Y=L_TMP; L_G=L_TMP+10240
L_KS=137216
L_SY=L_KS+3*8704
L_U=STAGE+32
L_WD=[0,15360, L_U+3*16640, L_U+3*16640+15360]
assert L_WD[3]+15360<=L_TMP and L_G+256<=L_KS and L_SY+64<=163840 and L_U%16==0
SPIN=20000
sWG,sWAVE,sI,sJ,sKB0,sTI,sDJ=2,3,4,5,6,7,8
pU,pAR,pAI,pBR,pBI,pCR,pCI,pLDT,pDS,pWG,pWU,pWD,pGW,pOUT,pDBG,pWS=16,18,20,22,24,26,28,30,32,36,38,40,42,44,46,48
rX,rWG,rWU,rWD,rWS,rOUT,rGW=52,56,60,64,68,72,76
sKB,sXO,sWO,sD=80,81,82,83
class Opt: pass
def srd(g,r,p,n):
    g(f's_mov_b32 s{r}, s{p}\ns_mov_b32 s{r+1}, s{p+1}\ns_mov_b32 s{r+2}, {n}\ns_mov_b32 s{r+3}, 0x20000')
def emit(g,items):
    for it in items:
        k=it[0]
        if k=='i': g(it[1])
        elif k=='vm': g.vmem(it[1],it[2])
        elif k=='lds': g.lds(it[1],it[2] if len(it)>2 else None)
        elif k=='wvm': g.wait_vm(it[1])
        elif k=='wlg': g.wait_lg(it[1])
def merge(main,side,first=0,last=None):
    if last is None: last=len(main)
    out=[]; n=len(side); k=0
    for i,it in enumerate(main):
        while k<n and i>=first+(last-first)*k//n: out+=side[k]; k+=1
        out.append(it)
    while k<n: out+=side[k]; k+=1
    return out
```

```python
from consts import *
ACC=16; FR=[112,132]; VXA=2; VWA=6; VH=7
def cpath(s):
    g=s.g; o=s.o; g.reset(); g.lab('CPATH')
    if o.prio: g('s_setprio 2')
    g(f's_lshr_b32 s12, s{sWAVE}, 1\ns_and_b32 s13, s{sWAVE}, 1')
    g('v_and_b32 v10, 31, v0\nv_lshlrev_b32 v10, 7, v10\ns_lshl_b32 s9, s12, 13\nv_add_u32 v10, s9, v10')
    g('v_bfe_u32 v11, v0, 1, 3\nv_lshrrev_b32 v12, 5, v0\nv_xor_b32 v11, v11, v12')
    g(f'v_lshl_add_u32 v{VXA}, v11, 4, v10')
    for ks in range(1,4): g(f'v_xor_b32 v{VXA+ks}, {32*ks}, v{VXA}')
    g(f'v_bfe_u32 v10, v0, 4, 1\nv_mul_u32_u24 v13, {UPOFF}, v10\nv_bfe_u32 v11, v0, 2, 2\nv_lshl_add_u32 v11, v12, 3, v11')
    g(f'v_mul_u32_u24 v11, 192, v11\nv_add_u32 v13, v13, v11\nv_and_b32 v11, 3, v0\nv_lshl_add_u32 v13, v11, 3, v13')
    g(f's_mul_i32 s9, s13, 96\ns_add_u32 s9, s9, {WOFF}\nv_add_u32 v{VWA}, s9, v13')
    g(f'v_and_b32 v11, 15, v0\nv_lshlrev_b32 v11, 4, v11\nv_lshl_add_u32 v11, v12, 8, v11\nv_lshl_add_u32 v{VH}, v10, 10, v11')
    for r in range(96): g(f'v_mov_b32 v{ACC+r}, 0')
    g('s_waitcnt lgkmcnt(0)')
    srd(g,rWS,pWS,WS_END); srd(g,rWD,pWD,1966080); srd(g,rOUT,pOUT,2621440)
    g(f's_or_b32 s9, s{sWG}, s{sWAVE}\ns_cmp_eq_u32 s9, 0\ns_cbranch_scc0 NOINIT')
    g('v_lshlrev_b32 v10, 4, v0')
    for k in range(9):
        if k%4==0: g(f's_mov_b32 s9, {WS_FL+1024*k}')
        g(f'buffer_store_dwordx4 v[{ACC}:{ACC+3}], v10, s[{rWS}:{rWS+3}], s9 offen offset:{1024*(k%4)} sc1')
    g(f's_waitcnt vmcnt(0)\nv_mov_b32 v11, 1\ns_mov_b64 exec, 1\nglobal_store_dword v{ACC}, v11, s[{pDBG}:{pDBG+1}] sc1\ns_mov_b64 exec, -1')
    g.lab('NOINIT')
    s.gemm1(); s.gemm2(); s.final()
def gemm1(s):
    g=s.g; o=s.o
    def reads(ks,F):
        x=lambda tj:(f'ds_read_b128 {v(F+12+4*tj,4)}, v{VXA+ks} offset:{4096*tj}',('x',F,tj))
        w=lambda fi,h:(f'ds_read_b64_tr_b16 {v(F+4*fi+2*h,2)}, v{VWA} offset:{ks*3072+h*768+fi*32}',('w',F,fi))
        return [x(0),w(0,0),w(0,1),x(1),w(1,0),w(1,1),w(2,0),w(2,1)]
    def mf(F,fi,tj):
        g.wait_lg(('w',F,fi)); g.wait_lg(('x',F,tj)); a=ACC+16*(3*tj+fi)
        g(f'v_mfma_f32_32x32x16_bf16 {v(a,16)}, {v(F+4*fi,4)}, {v(F+12+4*tj,4)}, {v(a,16)}')
    g(f's_mov_b32 s80, 0\ns_mov_b32 s81, 0\ns_mov_b32 s83, {-2*STAGE}')
    g('s_barrier'); s.stamp(1)
    if o.stamps: g('s_waitcnt lgkmcnt(0)')
    for t,tag in reads(0,FR[0]): g.lds(t,tag)
    st0=list(g.lg)
    g.lab('G1')
    g(f's_cmp_eq_u32 s81, 2\ns_cselect_b32 s82, s83, {STAGE}\ns_cselect_b32 s81, -1, s81\ns_add_u32 s81, s81, 1')
    order=[(0,0),(0,1),(1,0),(1,1),(2,0),(2,1)]
    for ks in range(4):
        F=FR[ks&1]; R=reads((ks+1)&3,FR[(ks+1)&1])
        if ks==3: g.wait_lg()
        for k,(fi,tj) in enumerate(order):
            mf(F,fi,tj)
            if ks==3 and k==0: g('s_barrier')
            if k<4:
                for t,tag in R[2*k:2*k+2]: g.lds(t,tag)
            if k==4:
                if ks==0: g(f'v_add_u32 v{VXA}, s82, v{VXA}\nv_add_u32 v{VXA+1}, s82, v{VXA+1}')
                if ks==1: g(f'v_add_u32 v{VXA+2}, s82, v{VXA+2}')
                if ks==2: g(f'v_add_u32 v{VXA+3}, s82, v{VXA+3}\nv_add_u32 v{VWA}, s82, v{VWA}')
                if ks==3: g('s_add_u32 s80, s80, 1\ns_cmp_lt_u32 s80, 10')
    assert g.lg==st0
    g('s_cbranch_scc1 G1')
    s.stamp(2)
    g(f's_lshl_b32 s9, s{sI}, 1\ns_add_u32 s9, s9, s12\ns_mul_i32 s9, s9, 196608')
    g(f's_mul_i32 s10, s{sJ}, 6\ns_mul_i32 s11, s13, 3\ns_add_u32 s10, s10, s11')
    for fi in range(3):
        g(f's_add_u32 s11, s10, {fi}\ns_lshr_b32 s15, s11, 1\ns_lshl_b32 s15, s15, 12\ns_and_b32 s11, s11, 1\ns_lshl_b32 s11, s11, 9\ns_add_u32 s11, s11, s15\ns_add_u32 s{80+fi}, s11, s9')
    for fi,tj in order:
        a=ACC+16*(3*tj+fi)
        for r in range(8): g(f'v_mul_f32 v{a+r}, v{a+r}, v{a+r+8}')
        for r in range(4): g(f'v_cvt_pk_bf16_f32 v{a+r}, v{a+2*r}, v{a+2*r+1}')
        g.vmem(f'buffer_store_dwordx4 {v(a,4)}, v{VH}, s[{rWS}:{rWS+3}], s{80+fi} offen offset:{2048*tj} sc1','hst')
    g.wait_lg()
VD=2; VHL=8; VAR=12; A2=16; AF=[96,116]; HB=136; NH=7
def gemm2(s):
    g=s.g; o=s.o
    g(f's_mul_i32 s12, s{sWAVE}, 15360\ns_cmp_ge_u32 s{sWAVE}, 2\ns_cselect_b32 s9, {L_WD[2]-30720}, 0\ns_add_u32 s12, s12, s9')
    g(f's_mul_i32 s13, s{sWAVE}, 491520\ns_mul_i32 s9, s{sDJ}, 160\ns_add_u32 s13, s13, s9')
    g(f's_mul_i32 s14, s{sTI}, 196608\ns_mul_i32 s9, s{sWAVE}, 49152\ns_add_u32 s14, s14, s9')
    g('v_lshlrev_b32 v13, 4, v0')
    for q in range(5):
        g(f'v_add_u32 v14, {64*q}, v0\nv_mul_u32_u24 v14, 6554, v14\nv_lshrrev_b32 v14, 16, v14\nv_mul_u32_u24 v14, 1120, v14\nv_add_u32 v{VD+q}, v14, v13')
    g(f'v_add_u32 v{VD+4}, 4096, v{VD+4}')
    def wd(st):
        b=(st%3)*5120; t=('wd',st); d=lambda q,off:('vm',f'buffer_load_dwordx4 v{VD+q}, s[{rWD}:{rWD+3}], s13 offen offset:{off} lds',t)
        return [[('i',f's_add_u32 m0, s12, {b}\ns_nop 0'),d(0,0)],[d(1,1024)],[d(2,2048)],[d(3,3072),('i',f's_add_u32 m0, s12, {b+4096}')],
                [('i','s_nop 0'),d(4,0),('i','s_add_u32 s13, s13, 40960')]]
    for st in range(3): emit(g,s.flat(wd(st)))
    for tau in range(4):
        g(f's_add_u32 s9, s{sWAVE}, {tau}\ns_and_b32 s9, s9, 3\ns_lshl_b32 s9, s9, 10\nv_add_u32 v{VHL+tau}, s9, v13')
    g('v_bfe_u32 v14, v0, 2, 2\nv_bfe_u32 v15, v0, 4, 1\nv_lshl_add_u32 v14, v15, 2, v14\nv_lshrrev_b32 v15, 5, v0\nv_lshl_add_u32 v14, v15, 4, v14')
    g(f'v_mul_u32_u24 v14, 160, v14\nv_and_b32 v15, 3, v0\nv_mul_u32_u24 v15, 40, v15\nv_add3_u32 v{VAR}, v14, v15, s12')
    g.wait_vm('hst'); s.arrive_h(14,15); s.stamp(3)
    g(f's_lshl_b32 s10, s{sWAVE}, 2\ns_lshl_b32 s10, 15, s10\nv_mov_b32 v14, {L_SY+4}\ns_mov_b32 s15, 0')
    if o.prio: g('s_setprio 0')
    g.lab('HW'); g('ds_read_b32 v15, v14\ns_waitcnt lgkmcnt(0)\nv_readfirstlane_b32 s9, v15')
    g(f's_add_u32 s15, s15, 1\ns_cmp_gt_u32 s15, {SPIN*8}\ns_cbranch_scc1 HX\ns_and_b32 s9, s9, s10\ns_cmp_eq_u32 s9, s10\ns_cbranch_scc0 HW'); g.lab('HX')
    if o.prio: g(f's_setprio {o.prio2}')
    s.stamp(4)
    def hl(st,tau):
        it=[('vm',f'buffer_load_dwordx4 {v(HB+16*(st%NH)+4*tau,4)}, v{VHL+tau}, s[{rWS}:{rWS+3}], s14 offen sc1',('h',st,tau))]
        if tau==3: it.append(('i','s_add_u32 s14, s14, 4096'))
        return it
    for st in range(NH):
        for tau in range(4): emit(g,hl(st,tau))
    def rd(st):
        F=AF[st&1]
        return [[('lds',f'ds_read_b64_tr_b16 {v(F+4*n+2*h,2)}, v{VAR} offset:{(st%3)*5120+8*n+1280*h}',('a',st))] for n in range(5) for h in range(2)]
    if o.stamps: g('s_waitcnt lgkmcnt(0)')
    g.wait_vm(('wd',0)); emit(g,s.flat(rd(0)))
    for st in range(12):
        F=AF[st&1]; main=[]
        for tau in range(4):
            for n in range(5):
                a=A2+20*tau+4*n; c=v(a,4) if st else '0'
                it=[]
                if n==0: it.append(('wvm',('h',st,tau)))
                it.append(('i',f'v_mfma_f32_16x16x32_bf16 {v(a,4)}, {v(F+4*n,4)}, {v(HB+16*(st%NH)+4*tau,4)}, {c}'))
                if n==4 and st+NH<12: it+=hl(st+NH,tau)
                main.append(it)
        side=[]
        if st+3<12: side+=wd(st+3)
        if st+1<12:
            R=rd(st+1); R[0]=[('wvm',('wd',st+1))]+R[0]; side+=R
        g.wait_lg(('a',st))
        for k,it in enumerate(main):
            emit(g,it)
            if k<len(side): emit(g,side[k])
    s.stamp(5)
def final(s):
    g=s.g; o=s.o
    g('v_add_u32 v14, s12, v13')
    for tau in range(1,4):
        g(f's_sub_u32 s9, s{sWAVE}, {tau}\ns_and_b32 s9, s9, 3\ns_mul_i32 s10, s9, 15360\ns_cmp_ge_u32 s9, 2\ns_cselect_b32 s9, {L_WD[2]-30720}, 0\ns_add_u32 s10, s10, s9')
        g(f'v_add_u32 v{1+tau}, s10, v13')
        for n in range(5): g.lds(f'ds_write_b128 v14, {v(A2+20*tau+4*n,4)} offset:{(tau-1)*5120+n*1024}')
    g(f'v_lshrrev_b32 v8, 4, v0\nv_mul_u32_u24 v9, 20, v8\nv_bfe_u32 v10, v0, 2, 2\nv_add_u32 v10, v9, v10\nv_lshlrev_b32 v10, 7, v10\nv_and_b32 v11, 3, v0\nv_lshl_add_u32 v10, v11, 3, v10')
    g(f's_lshl_b32 s9, s{sWAVE}, 5\ns_add_u32 s10, s9, {L_Y}\nv_add_u32 v5, s10, v10')
    g(f'v_and_b32 v11, 15, v0\ns_lshl_b32 s9, s9, 1\ns_add_u32 s10, s9, {L_G}\nv_lshl_add_u32 v6, v11, 2, s10')
    g(f'v_mul_u32_u24 v11, 1280, v11\nv_lshl_add_u32 v7, v9, 1, v11')
    g(f's_lshl_b32 s9, s{sTI}, 2\ns_add_u32 s9, s9, s{sWAVE}\ns_mul_i32 s9, s9, 20480\ns_mul_i32 s10, s{sDJ}, 160\ns_add_u32 s11, s9, s10')
    g.wait_lg(); g('s_barrier'); s.stamp(6)
    if o.stamps: g('s_waitcnt lgkmcnt(0)')
    Y=AF[0]; GG=AF[0]+10; P=HB
    g.lds(f'ds_read_b32 v{GG}, v6','g')
    for n in range(5):
        g.lds(f'ds_read_b64_tr_b16 {v(Y+2*n,2)}, v5 offset:{512*n}',('y',n))
        for tau in range(1,4): g.lds(f'ds_read_b128 {v(P+12*n+4*(tau-1),4)}, v{1+tau} offset:{(tau-1)*5120+n*1024}',('p',n))
        if n>=2: fin(g,n-2,Y,GG,P)
    fin(g,3,Y,GG,P); fin(g,4,Y,GG,P)
    s.stamp(7); s.dump_stamps((0,[(k,1+k) for k in range(8)])); g('s_endpgm')
def fin(g,n,Y,GG,P):
    g.wait_lg(('p',n)); a=A2+4*n; O=AF[1]; T=AF[0]+12; p=P+12*n
    for e in range(4): g(f'v_add_f32 v{a+e}, v{a+e}, v{p+e}\nv_add_f32 v{p+4+e}, v{p+4+e}, v{p+8+e}')
    for e in range(4):
        g(f'v_lshlrev_b32 v{T+e}, 16, v{Y+2*n+e//2}' if e%2==0 else f'v_and_b32 v{T+e}, 0xffff0000, v{Y+2*n+e//2}')
        g(f'v_add_f32 v{a+e}, v{a+e}, v{p+4+e}')
    for e in range(4): g(f'v_sub_f32 v{T+e}, v{T+e}, v{a+e}')
    for e in range(4): g(f'v_fmac_f32 v{a+e}, v{GG}, v{T+e}')
    g(f'v_cvt_pk_bf16_f32 v{O+2*n}, v{a}, v{a+1}\nv_cvt_pk_bf16_f32 v{O+2*n+1}, v{a+2}, v{a+3}')
    if n in(1,3): g.vmem(f'buffer_store_dwordx4 {v(O+2*n-2,4)}, v7, s[{rOUT}:{rOUT+3}], s11 offen offset:{8*(n-1)}')
    if n==4: g.vmem(f'buffer_store_dwordx2 {v(O+8,2)}, v7, s[{rOUT}:{rOUT+3}], s11 offen offset:32')
```

```python
from consts import *
I=lambda t:('i',t)
SA=10; FA=18; RAW=20; LDT,DSK=32,33; DT,DTL,DTP=34,35,36
B_,C_,ZR,ZI,CC=38,40,42,43,44; E1,E8,E256,E512,E1024=46,50,54,58,62; TM=66; CVT=70; P0=80
BF,AFR,KA=128,160,192
sKS,sUB,sT0,sT1=34,35,50,51
def cmul(s,d,a,b):
    if s.o.pk:
        return [I(f'v_pk_mul_f32 {v(d,2)}, {v(a,2)}, {v(b,2)} op_sel:[0,0] op_sel_hi:[0,1]'),
                I(f'v_pk_fma_f32 {v(d,2)}, {v(a,2)}, {v(b,2)}, {v(d,2)} op_sel:[1,1,0] op_sel_hi:[1,0,1] neg_lo:[0,1,0]')]
    return [I(f'v_mul_f32 v{d}, v{a}, v{b}'),I(f'v_mul_f32 v{d+1}, v{a}, v{b+1}'),
            I(f'v_fma_f32 v{d}, -v{a+1}, v{b+1}, v{d}'),I(f'v_fmac_f32 v{d+1}, v{a+1}, v{b}')]
def Ex(dst,x):
    L=[]
    if x!=1:
        L+=[I(f'v_mul_f32 v{TM}, {float(x).hex() and hex(fb(x))}, v{ZR}'),I(f'v_mul_f32 v{TM+1}, {hex(fb(x))}, v{ZI}'),I(f'v_fract_f32 v{TM+1}, v{TM+1}')]; m=TM
    else: L+=[I(f'v_fract_f32 v{TM+1}, v{ZI}')]; m=ZR
    L+=[I(f'v_exp_f32 v{TM}, v{m}'),I(f'v_cos_f32 v{dst}, v{TM+1}'),I(f'v_sin_f32 v{dst+1}, v{TM+1}'),
        I(f'v_mul_f32 v{dst}, v{dst}, v{TM}'),I(f'v_mul_f32 v{dst+1}, v{dst+1}, v{TM}')]
    return L
def fb(x):
    import struct; return struct.unpack('<I',struct.pack('<f',x))[0]
class Rows:
    def __init__(s,L): s.L=L; s.free=list(range(CVT,CVT+10)); s.pend={}
    def put(s,row,mk):
        r=s.free.pop(0); s.L.append(I(mk(r))); k=row>>2
        if k in s.pend:
            r0,row0=s.pend.pop(k)
            s.L.append(('lds',f'ds_write2_b32 v{SA+k}, v{r0}, v{r} offset0:{68*(row0&3)} offset1:{68*(row&3)}')); s.free+=[r0,r]
        else: s.pend[k]=(r,row)
    def flush(s):
        for k,(r,row) in s.pend.items(): s.L.append(('lds',f'ds_write_b32 v{SA+k}, v{r} offset:{272*(row&3)}'))
        s.pend={}
def kgen_chunk(s,ch):
    H=[]
    for a,dst in enumerate([ZR,ZI,B_,B_+1,C_,C_+1]):
        H.append(I([f'v_lshlrev_b32 v{dst}, 16, v{RAW+a}',f'v_and_b32 v{dst}, 0xffff0000, v{RAW+a}',f'v_lshlrev_b32 v{dst}, 16, v{RAW+6+a}'][ch]))
    H+=[I(f'v_mul_f32 v{ZR}, v{ZR}, v{DTL}'),I(f'v_mul_f32 v{ZI}, v{ZI}, v{DTP}'),I(f'v_mul_f32 v{B_}, v{B_}, v{DT}'),I(f'v_mul_f32 v{B_+1}, v{B_+1}, v{DT}')]
    H+=Ex(E8,8)
    R=Rows(H); cv=lambda p,n='':(lambda r:f'v_cvt_pk_bf16_f32 v{r}, v{p}, {n}v{p+1}')
    R.put(0,lambda r:f'v_mov_b32 v{r}, 0x3f80'); R.put(1,cv(E8))
    prev=E8
    for j in range(2,32):
        d=P0+2*(j&1); H+=s.cmul(d,prev,E8); R.put(j,cv(d)); prev=d
    T=[]
    for k in range(8): T.append(('lds',f'ds_read_b128 {v(BF+4*k,4)}, v{FA} offset:{32*k}',('b',ch,k)))
    T+=s.cmul(CC,C_,B_)+Ex(E1,1)+Ex(E256,256)+Ex(E1024,1024)+s.cmul(E512,E256,E256)
    R=Rows(T); Tm=P0; P={0:CC,2:P0+2,4:P0+4,6:P0+6,8:P0+8}; Q={0:P0+10,4:P0+12,8:P0+14}; S=[P0+16,P0+18,P0+20,P0+22]
    row=lambda half,r:8*(r//4)+4*half+r%4
    R.put(row(0,0),cv(CC,'-')); prev=CC
    for hi in range(1,8):
        d=P.get(hi,Tm); T+=s.cmul(d,prev,E1); R.put(row(0,hi),cv(d,'-')); prev=d
    T+=s.cmul(P[8],CC,E8)
    for n,k in enumerate([0,2,4,6,8]): T+=s.cmul(Tm,P[k],E256); R.put(row(0,8+n),cv(Tm,'-'))
    for n,k in enumerate([0,4,8]): T+=s.cmul(Q[k],P[k],E512); R.put(row(0,13+n),cv(Q[k],'-'))
    for n,k in enumerate([0,4,8]): T+=s.cmul(Tm,Q[k],E256); R.put(row(1,n),cv(Tm,'-'))
    pa,pb=P[0],P[8]
    for m in range(4):
        a,b=S[2*(m&1)],S[2*(m&1)+1]; E=E256 if m else E1024
        T+=s.cmul(a,pa,E); R.put(row(1,3+2*m),cv(a,'-')); T+=s.cmul(b,pb,E); R.put(row(1,4+2*m),cv(b,'-')); pa,pb=a,b
    R.flush()
    for k in range(8): T.append(('lds',f'ds_read_b128 {v(AFR+4*k,4)}, v{FA} offset:{32*k}',('a',ch,k)))
    M=[]
    for k in range(8):
        c=v(KA,16) if (ch or k) else '0'
        M.append([('wlg',('a',ch,k)),I(f'v_mfma_f32_32x32x16_bf16 {v(KA,16)}, {v(AFR+4*k,4)}, {v(BF+4*k,4)}, {c}')])
    return H,T,M
def kgen_expand(s):
    L=[]; VE,VZ,t=10,11,12; X=BF; cv=lambda d,a,b:L.append(I(f'v_cvt_pk_bf16_f32 v{d}, v{a}, v{b}'))
    L+=[I(f'v_and_b32 v{t}, 31, v0'),I(f'v_lshlrev_b32 v{t}, 4, v{t}'),I(f's_add_u32 s9, s{sKS}, 496'),I(f'v_sub_u32 v{VE}, s9, v{t}'),
        I(f'v_add_u32 v{VZ}, s{sKS}, v{t}'),I(f'v_and_b32 v{t}, 1, v0'),I(f'v_cmp_eq_u32 vcc, 1, v{t}'),I(f'v_lshlrev_b32 v{DSK}, 16, v{DSK}')]
    for k in range(4): L.append(I(f'v_mov_b32 v{X+k}, 0'))
    L.append(I(f's_nop 3\ns_mov_b64 exec, 1\nv_add_f32 v{KA}, v{KA}, v{DSK}\ns_mov_b32 exec_lo, -1'))
    n=[1]
    def chunk(e,base):
        x=X+4*n[0]; n[0]+=1
        for k in range(4): cv(x+k,e[7-2*k],e[6-2*k])
        L.append(('lds',f'ds_write_b128 v{VE}, {v(x,4)} offset:{2*(1792-base)}'))
    a=lambda r:KA+r
    L.append(('lds',f'ds_write_b128 v{VZ}, {v(X,4)} offset:4096'))
    chunk([a(r) for r in range(8)],0)
    chunk([a(8+k) for k in[0,0,1,2,2,2,3,4]],256)
    chunk([a(13+k) for k in[0,0,0,1,1,1,2,2]],512)
    L.append(I('s_mov_b32 exec_lo, 0\ns_mov_b32 exec_hi, -1'))
    chunk([a(k) for k in[0,0,0,1,1,1,2,2]],768)
    for m in range(4):
        z0,z8=a(3+2*m),a(4+2*m); L.append(I(f'v_cndmask_b32 v{t}, v{z0}, v{z8}, vcc'))
        chunk([z0,z0,z0,z0,t,z8,z8,z8],1024+256*m)
    L.append(I('s_mov_b64 exec, -1'))
    return L
def xpaths(s):
    g=s.g; o=s.o; g.reset()
    s.loader_setup(); emit(g,s.flat(s.stage(0)))
    g(f's_cmp_eq_u32 s14, 3\ns_cbranch_scc1 X3PATH\ns_and_b32 s9, s{sWG}, 1\ns_add_u32 s10, s9, s14\ns_cmp_eq_u32 s10, 3\ns_cbranch_scc1 LOADONLY')
    st0=list(g.vm)
    g(f's_lshr_b32 s10, s{sWG}, 1\ns_mul_i32 s10, s10, 5\ns_mul_i32 s9, s9, 3\ns_add_u32 s10, s10, s9\ns_add_u32 s{sD}, s10, s14')
    g(f's_mul_i32 s9, s{sD}, 384\nv_lshl_add_u32 v10, v0, 2, s9\nv_lshl_add_u32 v11, v0, 1, s9\ns_lshl_b32 s9, s{sD}, 1\nv_mov_b32 v12, s9')
    g.vmem(f'global_load_ushort v{LDT}, v12, s[{pLDT}:{pLDT+1}]','par')
    for a,p in enumerate([pAR,pAI,pBR,pBI,pCR,pCI]): g.vmem(f'global_load_dword v{RAW+a}, v10, s[{p}:{p+1}]','par')
    emit(g,s.flat(s.stage(1)))
    for a,p in enumerate([pAR,pAI,pBR,pBI,pCR,pCI]): g.vmem(f'global_load_ushort v{RAW+6+a}, v11, s[{p}:{p+1}] offset:256','par2')
    g.vmem(f'global_load_ushort v{DSK}, v12, s[{pDS}:{pDS+1}]','par2')
    emit(g,s.flat(s.stage(2)))
    g(f's_mul_i32 s{sKS}, s14, 8704\ns_add_u32 s{sKS}, s{sKS}, {L_KS}\ns_mul_i32 s{sUB}, s14, 16640\ns_add_u32 s{sUB}, s{sUB}, {L_U}')
    g(f'v_lshl_add_u32 v{SA}, v0, 2, s{sKS}')
    for k in range(1,8): g(f'v_add_u32 v{SA+k}, {1088*k}, v{SA}')
    g(f'v_and_b32 v{FA}, 31, v0\nv_mul_u32_u24 v{FA}, 272, v{FA}\nv_lshrrev_b32 v19, 5, v0\nv_lshlrev_b32 v19, 4, v19\nv_add3_u32 v{FA}, v{FA}, v19, s{sKS}')
    g.wait_vm(('st',0)); g('s_barrier'); s.stamp(1)
    if o.stamps: g('s_waitcnt lgkmcnt(0)')
    main=[('wvm','par'),I(f'v_lshlrev_b32 v{LDT}, 16, v{LDT}'),I(f'v_mul_f32 v{LDT}, {hex(fb(1.4426950408889634))}, v{LDT}'),I(f'v_exp_f32 v{LDT}, v{LDT}\ns_nop 0'),
          I(f'v_cvt_pk_bf16_f32 v{DT}, v{LDT}, v{LDT}'),I(f'v_lshlrev_b32 v{DT}, 16, v{DT}'),
          I(f'v_mul_f32 v{DTL}, {hex(fb(1.4426950408889634))}, v{DT}'),I(f'v_mul_f32 v{DTP}, {hex(fb(0.15915494309189535))}, v{DT}')]
    M=None
    for ch in range(3):
        H,T,M2=s.kgen_chunk(ch)
        if ch==2: main.append(('wvm','par2'))
        if M: H=merge(H,M,12,12+8*o.mgap)
        main+=H+T; M=M2
    tail=[it for m in M for it in m]+s.kgen_expand()
    w=[o.w0]+[10]*7+[o.w8,o.w9]; tot=sum(w); cut=[len(main)*sum(w[:k])//tot for k in range(11)]
    for iv in range(9):
        part=main[cut[iv]:cut[iv+1]]
        if 1<=iv<=7: part=merge(part,s.stage(iv+2),0,len(part)*o.dfrac//100)
        emit(g,part); g.wait_vm(('st',iv+1)); g('s_barrier')
    s.stamp(2)
    if o.stamps: g('s_waitcnt lgkmcnt(0)'); g.lg=[]
    g(f's_mul_i32 s{sT0}, s{sD}, {ROWS}\nv_lshlrev_b32 v9, 4, v0')
    for c in range(4):
        g(f's_add_u32 m0, s{sUB}, {32+4160*c}\ns_add_u32 s{sT1}, s{sT0}, {WS_UT-6+2*c}')
        for q in range(4): g.vmem(f'buffer_load_dwordx4 v9, s[{rWS}:{rWS+3}], s{sT1} offen offset:{1024*q} sc1 lds','u')
    emit(g,main[cut[9]:]); g('s_barrier')
    if o.prio: g(f's_setprio {o.prio3}')
    emit(g,tail); s.stamp(3)
    s.conv()
    g.lab('LOADONLY'); g.reset(); g.vm=list(st0)
    emit(g,s.flat(s.stage(1))); emit(g,s.flat(s.stage(2))); g.wait_vm(('st',0)); g('s_barrier')
    for iv in range(9):
        if 1<=iv<=7: emit(g,s.flat(s.stage(iv+2)))
        g.wait_vm(('st',iv+1)); g('s_barrier')
    g('s_endpgm')
    g.lab('X3PATH'); g.reset(); g.vm=list(st0); s.x3path()
def conv(s):
    g=s.g; o=s.o; VU,VK,VS=2,3,4; CA=32; UF=[64,128]; KF=[96,160]
    g(f'v_and_b32 v5, 3, v0\nv_mul_u32_u24 v5, 4160, v5\nv_bfe_u32 v6, v0, 2, 2\nv_lshl_add_u32 v5, v6, 3, v5\nv_lshrrev_b32 v7, 4, v0\nv_lshl_add_u32 v5, v7, 4, v5')
    g(f's_add_u32 s9, s{sUB}, 8\nv_add_u32 v{VU}, s9, v5\nv_and_b32 v8, 15, v0\nv_lshlrev_b32 v5, 5, v8\nv_lshlrev_b32 v6, 4, v7\nv_sub_u32 v6, v6, v5')
    g(f's_add_u32 s10, s{sKS}, 480\nv_add_u32 v{VK}, s10, v6')
    g(f'v_bfe_u32 v6, v0, 4, 1\nv_lshl_add_u32 v5, v6, 9, v5\nv_lshrrev_b32 v6, 5, v0\nv_lshl_add_u32 v{VS}, v6, 4, v5')
    g(f'v_mul_u32_u24 v5, 4160, v7\nv_lshl_add_u32 v5, v8, 1, v5\nv_add_u32 v5, s9, v5\nv_add_u32 v6, v7, v8\nv_cmp_gt_u32 vcc, 15, v6')
    for r in range(32): g(f'v_mov_b32 v{CA+r}, 0')
    g(f's_add_u32 s{sT0}, s{sT0}, {WS_YT}\ns_mov_b32 s15, 0')
    g.wait_vm('u'); s.stamp(4)
    g(f's_mov_b64 exec, vcc\nds_write_b16 v5, v{CA}\ns_mov_b64 exec, -1')
    def reads(b,off):
        R=[]
        for p in range(8):
            R.append(f'ds_read_b128 {v(KF[b]+4*p,4)}, v{VK} offset:{3584-512*p+off}')
            R+=[f'ds_read_b64 {v(UF[b]+4*p+2*h,2)}, v{VU} offset:{512*p+8*h+off}' for h in range(2)]
        return R
    rem={q:[(p,q-p) for p in range(q+1)] for q in range(8)}; order=[]; last=[]
    while any(rem.values()):
        c=[q for q in rem if rem[q] and q not in last[-3:]] or [q for q in rem if rem[q] and q not in last[-2:]] or [q for q in rem if rem[q]]
        q=max(c,key=lambda q:len(rem[q])); order.append((q,)+rem[q].pop(0)); last.append(q)
    for t in reads(0,0): g(t)
    g.lab('CV')
    for b in range(2):
        R=reads(1-b,64 if b==0 else 0); g('s_waitcnt lgkmcnt(0)')
        for k,(q,p,m) in enumerate(order):
            g(f'v_mfma_f32_16x16x32_bf16 {v(CA+4*q,4)}, {v(UF[b]+4*p,4)}, {v(KF[b]+4*m,4)}, {v(CA+4*q,4)}')
            if k<24: g(R[k])
            if k==26 and b==0: g(f'v_add_u32 v{VU}, 128, v{VU}\nv_add_u32 v{VK}, 128, v{VK}')
            if k==34 and b==1: g('s_add_u32 s15, s15, 1\ns_cmp_lt_u32 s15, 4')
    g('s_cbranch_scc1 CV'); s.stamp(5)
    g(f's_lshr_b32 s9, s{sD}, 4\ns_lshl_b32 s9, s9, 7\ns_and_b32 s10, s{sD}, 15\ns_lshl_b32 s10, s10, 2\ns_add_u32 s9, s9, s10\ns_add_u32 s9, s9, {FL_Y}\nv_mov_b32 v5, s9\nv_mov_b32 v6, 1')
    for q in range(8):
        for h in range(2): g(f'v_cvt_pk_bf16_f32 v{10+2*q+h}, v{CA+4*q+2*h}, v{CA+4*q+2*h+1}')
    for q in range(0,8,2):
        x=10+2*q; g(f'v_permlane16_swap_b32 v{x}, v{x+2}\nv_permlane16_swap_b32 v{x+1}, v{x+3}')
        g(f'buffer_store_dwordx4 {v(x,4)}, v{VS}, s[{rWS}:{rWS+3}], s{sT0} offen offset:{512*q} sc1')
    g(f's_waitcnt vmcnt(0)\ns_mov_b64 exec, 1\nbuffer_store_dword v6, v5, s[{rWS}:{rWS+3}], 0 offen sc1')
    s.stamp(6); s.dump_stamps(); g('s_endpgm')
def x3path(s):
    g=s.g; o=s.o; M=f's[{sKS}:{sKS+1}]'
    srd(g,rGW,pGW,1280); g(f'v_lshlrev_b32 v9, 4, v0\ns_mov_b32 m0, {L_GW}\nv_mov_b32 v30, 0')
    for q in range(2): g.vmem(f'buffer_load_dwordx4 v9, s[{rGW}:{rGW+3}], 0 offen offset:{1024*q} lds','gw')
    emit(g,s.flat(s.stage(1))); emit(g,s.flat(s.stage(2)))
    g(f'v_mov_b32 v31, 0\nv_mov_b32 v10, {L_SY}\nds_write_b64 v10, v[30:31]')
    g(f's_and_b32 s9, s{sJ}, 1\ns_lshl_b32 s9, s9, 2\nv_lshrrev_b32 v20, 4, v0\nv_add_u32 v21, s9, v20\nv_and_b32 v22, 7, v0\nv_xor_b32 v21, v21, v22')
    g(f'v_lshrrev_b32 v18, 3, v0\ns_lshl_b32 s9, s{sJ}, 10\nv_lshlrev_b32 v23, 7, v18\nv_lshl_add_u32 v23, v21, 4, v23\nv_add_u32 v10, s9, v23\nv_add_u32 v11, {2*STAGE}, v10')
    g(f'v_lshlrev_b32 v12, 4, v22\nv_add_u32 v12, {L_GW}, v12\ns_lshl_b32 s{sT0}, s{sKB0}, 7')
    g('v_bfe_u32 v21, v0, 2, 2\nv_lshl_add_u32 v21, v20, 3, v21\nv_lshlrev_b32 v21, 7, v21\nv_bfe_u32 v22, v0, 1, 1\nv_bfe_u32 v23, v0, 3, 1\nv_xor_b32 v22, v22, v23')
    g('v_bfe_u32 v23, v0, 4, 1\nv_lshl_add_u32 v22, v23, 2, v22\nv_lshl_add_u32 v21, v22, 4, v21\nv_and_b32 v22, 1, v0\nv_lshl_add_u32 v14, v22, 3, v21')
    for m in range(1,4): g(f'v_xor_b32 v{14+m}, {32*m}, v14')
    g(f'v_and_b32 v22, 15, v0\nv_mul_u32_u24 v22, {ROWS}, v22\nv_lshl_add_u32 v19, v20, 4, v22\ns_cmp_lt_u32 s{sJ}, 10\ns_cselect_b32 s9, 0, 0x40000000\nv_add_u32 v19, s9, v19')
    g('s_waitcnt lgkmcnt(0)'); g.wait_vm('gw'); g('s_barrier'); s.stamp(1)
    def gate(st):
        g(f'v_add_u32 v13, s{sT0}, v12\nds_read_b128 v[20:23], v{11 if st%3==2 else 10} offset:{STAGE if st%3==1 else 0}\nds_read_b128 v[24:27], v13')
        g(f's_add_u32 s{sT0}, s{sT0}, 128\ns_cmp_eq_u32 s{sT0}, 1280\ns_cselect_b32 s{sT0}, 0, s{sT0}')
    def dots():
        g('s_waitcnt lgkmcnt(0)')
        for k in range(4): g(f'v_dot2_f32_bf16 v30, v{20+k}, v{24+k}, v30')
    for iv in range(9):
        gate(iv)
        if iv==0:
            g(f's_cmp_lt_u32 s{sJ}, 10\ns_cbranch_scc0 NOT0')
            for db in range(4):
                for tb in range(4):
                    for h in range(2): g(f'ds_read_b64_tr_b16 {v(64+16*db+4*tb+2*h,2)}, v{14+(db^h)} offset:{512*h+4096*tb}')
            g.lab('NOT0')
        if iv==4:
            g.wait_vm('go'); g('v_readfirstlane_b32 s9, v32\ns_nop 0\ns_cmp_eq_u32 s9, 1\ns_cbranch_scc1 GOOK')
            s.spin(f'global_load_dword v32, v31, s[{pDBG}:{pDBG+1}] sc1','v_cmp_eq_u32 vcc, 1, v32','-1'); g.lab('GOOK')
            g(f's_cmp_lt_u32 s{sJ}, 10\ns_cbranch_scc0 NOT3\ns_lshl_b32 s9, s{sKB0}, 7\ns_lshl_b32 s10, s{sI}, 2\ns_add_u32 s9, s9, s10\ns_add_u32 s9, s9, {FL_UT}')
            g(f'v_mov_b32 v33, s9\ns_mov_b64 exec, 1\nbuffer_store_dword v32, v33, s[{rWS}:{rWS+3}], 0 offen sc1\ns_mov_b64 exec, -1'); g.lab('NOT3')
        if iv==7:
            g(f's_lshr_b32 s10, s{sWG}, 1\ns_mul_i32 s10, s10, 5\ns_and_b32 s9, s{sWG}, 1\ns_mul_i32 s11, s9, 3\ns_add_u32 s10, s10, s11\ns_add_u32 s11, s10, 2\ns_sub_u32 s11, s11, s9')
            g(f's_lshr_b32 s10, s10, 6\ns_lshr_b32 s11, s11, 6\ns_sub_u32 s11, s11, s10\ns_lshl_b32 s11, s11, 7\ns_lshl_b32 s10, s10, 7\ns_add_u32 s10, s10, {FL_UT}')
            g(f'v_bfe_u32 v33, v0, 4, 1\nv_mul_u32_u24 v33, s11, v33\nv_and_b32 v34, 15, v0\nv_lshl_add_u32 v33, v34, 2, v33\nv_add_u32 v33, s10, v33')
            g.vmem(f'buffer_load_dword v32, v33, s[{rWS}:{rWS+3}], 0 offen sc1','uf')
        if 1<=iv<=7: emit(g,s.flat(s.stage(iv+2)))
        if iv==1:
            g(f's_mul_i32 s9, s{sKB0}, {64*ROWS}\ns_lshl_b32 s10, s{sI}, 8\ns_add_u32 s9, s9, s10')
            for db in range(4):
                g(f's_add_u32 s10, s9, {WS_UT+16*db*ROWS}')
                for tb in range(4): g.vmem(f'buffer_store_dwordx4 {v(64+16*db+4*tb,4)}, v19, s[{rWS}:{rWS+3}], s10 offen offset:{64*tb} sc1','ut')
            g.vmem(f'global_load_dword v32, v31, s[{pDBG}:{pDBG+1}] sc1','go')
        if o.warm and 2<=iv<2+o.warm: s.warm(iv-2)
        dots(); g.wait_vm(('st',iv+1))
        if iv==8:
            g('v_cmp_eq_u32 vcc, 1, v32\ns_nop 0\ns_cmp_eq_u64 vcc, -1\ns_cbranch_scc1 UFOK')
            s.spin(f'buffer_load_dword v32, v33, s[{rWS}:{rWS+3}], 0 offen sc1','v_cmp_eq_u32 vcc, 1, v32','-1'); g.lab('UFOK')
        g('s_barrier')
    s.stamp(2); gate(9); dots(); g('s_barrier')
    for c in['quad_perm:[1,0,3,2]','quad_perm:[2,3,0,1]','row_half_mirror']: g(f's_nop 2\nv_add_f32_dpp v30, v30, v30 {c} row_mask:0xf bank_mask:0xf')
    g(f'v_mul_f32 v30, {hex(fb(-1.4426950408889634))}, v30\nv_exp_f32 v30, v30\ns_lshl_b32 s9, s{sI}, 9\nv_add_f32 v30, 1.0, v30\nv_rcp_f32 v30, v30')
    g(f's_lshl_b32 s10, s{sJ}, 5\ns_add_u32 s9, s9, s10\ns_add_u32 s9, s9, {WS_G}\nv_lshlrev_b32 v18, 2, v18\ns_mov_b32 exec_lo, 0x01010101\ns_mov_b32 exec_hi, 0x01010101')
    g(f'buffer_store_dword v30, v18, s[{rWS}:{rWS+3}], s9 offen sc1\ns_waitcnt vmcnt(0)'); s.arrive_h(20,21); s.stamp(3)
    g(f's_lshr_b32 s9, s{sTI}, 1\ns_lshl_b32 s9, s9, 7\ns_add_u32 s9, s9, {FL_H}\nv_lshl_add_u32 v33, v0, 2, s9\nv_mov_b32 v34, {L_SY+4}\ns_mov_b64 {M}, 0xffff\ns_mov_b64 exec, {M}')
    s.spin(f'buffer_load_dword v32, v33, s[{rWS}:{rWS+3}], 0 offen sc1','v_cmp_eq_u32 vcc, 1, v32\ns_nop 1\nv_mov_b32 v35, vcc_lo\nds_write_b32 v34, v35',M)
    g(f'v_mov_b32 v35, -1\nds_write_b32 v34, v35\ns_mov_b64 exec, -1'); s.stamp(4)
    g(f's_lshl_b32 s9, s{sTI}, 8\ns_add_u32 s9, s9, {WS_G}\ns_mov_b32 m0, {L_G}\nv_lshlrev_b32 v20, 2, v0\nbuffer_load_dword v20, s[{rWS}:{rWS+3}], s9 offen sc1 lds')
    g(f's_mul_i32 s9, s{sDJ}, 640\ns_add_u32 s9, s9, {FL_Y}\nv_lshrrev_b32 v20, 3, v0\nv_and_b32 v21, 7, v0\nv_lshlrev_b32 v22, 3, v21\nv_lshl_add_u32 v22, v20, 7, v22\nv_add_u32 v33, s9, v22')
    g(f'v_mul_u32_u24 v20, {ROWS}, v20\nv_lshl_add_u32 v20, v21, 4, v20\ns_mul_i32 s9, s{sDJ}, {80*ROWS}\ns_lshl_b32 s10, s{sTI}, 7\ns_add_u32 s9, s9, s10')
    g(f's_mov_b32 s{sKS}, -1\ns_mov_b32 s{sKS+1}, 0xff\ns_mov_b64 exec, {M}')
    s.spin(f'buffer_load_dwordx2 v[36:37], v33, s[{rWS}:{rWS+3}], 0 offen sc1','v_and_b32 v36, v36, v37\nv_cmp_eq_u32 vcc, 1, v36',M)
    g('s_mov_b64 exec, -1'); s.stamp(5)
    for q in range(10):
        g(f's_mov_b32 m0, {L_Y+1024*q}\ns_add_u32 s10, s9, {WS_YT+8*q*ROWS}\nbuffer_load_dwordx4 v20, s[{rWS}:{rWS+3}], s10 offen sc1 lds')
    g('s_waitcnt vmcnt(0)'); s.stamp(6); g('s_barrier'); s.dump_stamps((7,[(k,8+k) for k in range(1,7)])); g('s_endpgm')
def warm(s,k):
    pass
```

```python
import sys, os
sys.path.insert(0, os.path.dirname(os.path.abspath(__file__)))
from asmlib import G, v, s_, check
from consts import *
class Gen:
    def __init__(s,o):
        s.o=o; s.g=G(); s.nst=0; s.uid=0
    def L(s,p): s.uid+=1; return f'{p}_{s.uid}'
    def stamp(s,k):
        if s.o.stamps: s.g(f's_memrealtime s[{84+2*k}:{85+2*k}]')
    def dump_stamps(s):
        if not s.o.stamps: return
        g=s.g
        g('s_waitcnt lgkmcnt(0)\ns_mov_b64 exec, 1')
        g(f's_lshl_b32 s9, s{sWG}, 3\ns_add_u32 s9, s9, s{sWAVE}\ns_lshl_b32 s9, s9, 5\ns_add_u32 s9, s9, {WS_ST}\nv_mov_b32 v1, s9')
        for k in range(8): g(f'v_mov_b32 v{4+k}, s{84+2*k}')
        g(f'buffer_store_dwordx4 v[4:7], v1, s[{rWS}:{rWS+3}], 0 offen\nbuffer_store_dwordx4 v[8:11], v1, s[{rWS}:{rWS+3}], 0 offen offset:16')
    def prologue(s):
        g=s.g; o=s.o
        g(f's_cmp_ge_u32 s{sWG}, 256\ns_cbranch_scc1 END')
        g('s_load_dwordx16 s[16:31], s[0:1], 0\ns_load_dwordx16 s[32:47], s[0:1], 64\ns_load_dwordx2 s[48:49], s[0:1], 128')
        if o.stamps:
            for k in range(1,8): g(f's_mov_b32 s{84+2*k}, 0')
        s.stamp(0)
        g('v_lshrrev_b32 v1, 6, v0\nv_and_b32 v0, 63, v0')
        g(f'v_readfirstlane_b32 s{sWAVE}, v1')
        g(f's_and_b32 s9, s{sWG}, 7\ns_lshr_b32 s10, s{sWG}, 3')
        g(f's_lshr_b32 s11, s9, 2\ns_lshl_b32 s11, s11, 3\ns_and_b32 s12, s10, 7\ns_add_u32 s{sI}, s11, s12')
        g(f's_and_b32 s11, s9, 3\ns_lshl_b32 s11, s11, 2\ns_lshr_b32 s12, s10, 3\ns_add_u32 s{sJ}, s11, s12')
        if o.rot:
            g(f's_mul_i32 s11, s{sJ}, 3\ns_add_u32 s11, s11, s{sI}\ns_mul_i32 s12, s11, 205\ns_lshr_b32 s12, s12, 11\ns_mul_i32 s12, s12, 10\ns_sub_u32 s{sKB0}, s11, s12')
        else: raise NotImplementedError
        if o.g2map==0:
            g(f's_lshl_b32 s11, s9, 2\ns_and_b32 s12, s10, 3\ns_add_u32 s{sTI}, s11, s12\ns_lshr_b32 s{sDJ}, s10, 2')
        else:
            g(f's_lshr_b32 s11, s9, 1\ns_lshl_b32 s11, s11, 3\ns_and_b32 s12, s10, 7\ns_add_u32 s{sTI}, s11, s12')
            g(f's_and_b32 s11, s9, 1\ns_lshl_b32 s11, s11, 2\ns_lshr_b32 s12, s10, 3\ns_add_u32 s{sDJ}, s11, s12')
        g(f's_cmp_lt_u32 s{sWAVE}, 4\ns_cbranch_scc1 CPATH')
    VX,VW=2,6
    def loader_setup(s):
        g=s.g; VX,VW=s.VX,s.VW
        g(f's_sub_u32 s14, s{sWAVE}, 4')
        g('s_lshl_b32 s12, s14, 12\ns_mul_i32 s13, s14, 3072'); g(f's_add_u32 s13, s13, {WOFF}')
        g(f's_lshl_b32 s9, s{sI}, 7\ns_lshl_b32 s10, s14, 5\ns_add_u32 s9, s9, s10\ns_mul_i32 s9, s9, 1280')
        g('v_lshrrev_b32 v10, 3, v0\nv_mul_u32_u24 v10, 1280, v10\nv_add_u32 v10, s9, v10')
        g('v_and_b32 v11, 7, v0\nv_lshrrev_b32 v12, 4, v0\nv_xor_b32 v11, v11, v12')
        g(f'v_lshl_add_u32 v{VX}, v11, 4, v10')
        g('v_xor_b32 v11, 4, v11'); g(f'v_lshl_add_u32 v{VX+1}, v11, 4, v10\nv_add_u32 v{VX+1}, {8*1280-1024}, v{VX+1}')
        g(f'v_add_u32 v{VX+2}, {16*1280-2048}, v{VX}\nv_add_u32 v{VX+3}, {16*1280-2048}, v{VX+1}')
        g(f's_mul_i32 s9, s14, {16*3072}\ns_mul_i32 s10, s{sJ}, 192\ns_add_u32 s9, s9, s10')
        for q in range(3):
            g(f'v_add_u32 v10, {64*q}, v0\nv_mul_u32_u24 v11, 171, v10\nv_lshrrev_b32 v11, 11, v11')
            g(f'v_mul_u32_u24 v11, {3072-192}, v11\nv_lshl_add_u32 v11, v0, 4, v11\nv_add_u32 v{VW+q}, s9, v11')
        g(f's_mov_b32 s{sKB}, s{sKB0}')
        g('s_waitcnt lgkmcnt(0)')
        srd(g,rX,pU,2621440); srd(g,rWG,pWG,1966080); srd(g,rWU,pWU,1966080); srd(g,rWS,pWS,WS_END)
    def stage(s,st):
        VX,VW=s.VX,s.VW; b=(st%3)*STAGE; t=('st',st)
        G_=[]
        x=lambda q:('vm',f'buffer_load_dwordx4 v{VX+q}, s[{rX}:{rX+3}], s{sXO} offen offset:{1024*q} lds',t)
        w=lambda r,q:('vm',f'buffer_load_dwordx4 v{VW+q}, s[{r}:{r+3}], s{sWO} offen offset:{1024*q} lds',t)
        G_.append([('i',f's_add_u32 m0, s12, {b}\ns_lshl_b32 s{sXO}, s{sKB}, 7'),x(0)])
        G_+= [[x(1)],[x(2)],[x(3)]]
        G_.append([('i',f's_add_u32 m0, s13, {b}\ns_mul_i32 s{sWO}, s{sKB}, 196608'),w(rWG,0)])
        G_+= [[w(rWG,1)],[w(rWG,2)]]
        G_.append([('i',f's_add_u32 m0, s13, {b+UPOFF}\ns_add_u32 s{sKB}, s{sKB}, 1'),w(rWU,0)])
        G_+= [[w(rWU,1)],[w(rWU,2),('i',f's_cmp_eq_u32 s{sKB}, 10\ns_cselect_b32 s{sKB}, 0, s{sKB}')]]
        return G_
    def flat(s,G_): return [it for grp in G_ for it in grp]
    def spin(s,load,cmp_,mask):
        g=s.g; a=s.L('SP'); b=s.L('SX')
        g('s_mov_b32 s15, 0'); g.lab(a); g(load); g('s_waitcnt vmcnt(0)'); g(cmp_)
        g(f's_add_u32 s15, s15, 1\ns_cmp_gt_u32 s15, {SPIN}\ns_cbranch_scc1 {b}\ns_cmp_eq_u64 vcc, {mask}\ns_cbranch_scc0 {a}'); g.lab(b)
    def arrive_h(s,va,vb):
        g=s.g; l=s.L('HA')
        g(f's_mov_b64 exec, 1\nv_mov_b32 v{va}, {L_SY}\nv_mov_b32 v{vb}, 1\nds_add_rtn_u32 v{va}, v{va}, v{vb}\ns_waitcnt lgkmcnt(0)')
        g(f'v_readfirstlane_b32 s9, v{va}\ns_lshl_b32 s10, s{sI}, 7\ns_lshl_b32 s11, s{sJ}, 2\ns_cmp_eq_u32 s9, 4\ns_cbranch_scc0 {l}')
        g(f's_add_u32 s10, s10, s11\ns_add_u32 s10, s10, {FL_H}\nv_mov_b32 v{va}, s10')
        g(f'buffer_store_dword v{vb}, v{va}, s[{rWS}:{rWS+3}], 0 offen sc1'); g.lab(l); g('s_mov_b64 exec, -1')
    from gen_x import xpaths, kgen_chunk, kgen_expand, conv, x3path, cmul, warm
    from gen_c import cpath, gemm1, gemm2, final
    def build(s):
        g=s.g
        s.prologue(); s.xpaths(); s.cpath()
        g.lab('END'); g('s_endpgm')
        bad=check(g.L)
        for b in bad: print('HAZARD',b,file=sys.stderr)
        ref=open(os.path.join(os.path.dirname(os.path.abspath(__file__)),'..','cdna_kernels',NAME+'.s.ref')).read()
        hdr=ref[:ref.index('; Override launch')]
        hdr+='; generated by gen/gen.py: one persistent launch, 256 workgroups x 8 waves (4 GEMM waves + 4 loader/SSM waves)\n'
        hdr+='; @launch grid=(256,1,1) block=(512,1,1) lds=163840\n'
        hdr+=f'.amdgcn_target "amdgcn-amd-amdhsa--gfx950"\n.text\n.globl {NAME}_kernel\n.p2align 8\n.type {NAME}_kernel,@function\n{NAME}_kernel:\n'
        ftr=ref[ref.index('.section .rodata'):]
        return hdr+g.text()+ftr, len(bad)
def make(**kw):
    o=Opt(); o.stamps=False; o.rot=1; o.g2map=0; o.pk=1; o.prio=1; o.prio2=1; o.prio3=3; o.mgap=8; o.w0=12; o.w8=12; o.w9=8; o.dfrac=75; o.warm=0
    for k,x in kw.items(): setattr(o,k,x)
    return Gen(o).build()
if __name__=='__main__':
    kw={}
    out=sys.argv[1]
    for a in sys.argv[2:]:
        k,x=a.split('='); kw[k]=int(x)
    t,nb=make(**kw)
    open(out,'w').write(t)
    print('wrote',out,len(t.split('\n')),'lines, hazards:',nb)
```

```python
import sys, os
sys.path.insert(0, os.path.dirname(os.path.abspath(__file__)))
from asmlib import G, v, s_, check
from consts import *
class Gen:
    def __init__(s,o):
        s.o=o; s.g=G(); s.nst=0; s.uid=0
    def L(s,p): s.uid+=1; return f'{p}_{s.uid}'
    def stamp(s,k):
        if s.o.stamps: s.g(f's_memrealtime s[{84+2*k}:{85+2*k}]')
    def dump_stamps(s,who=None):
        if not s.o.stamps: return
        g=s.g
        g('s_waitcnt lgkmcnt(0)\ns_mov_b64 exec, 1')
        if s.o.stamps==2:
            if who is None: return
            l=s.L('DS'); g(f's_cmp_eq_u32 s{sWAVE}, {who[0]}\ns_cbranch_scc0 {l}\ns_not_b32 s84, s84\nv_mov_b32 v1, 0')
            for k,slot in who[1]: g(f'v_mov_b32 v2, s{84+2*k}\nglobal_atomic_umax v1, v2, s[{pDBG}:{pDBG+1}] offset:{4*slot}')
            g.lab(l); return
        g(f's_lshl_b32 s9, s{sWG}, 3\ns_add_u32 s9, s9, s{sWAVE}\ns_lshl_b32 s9, s9, 5\ns_add_u32 s9, s9, {WS_ST}\nv_mov_b32 v1, s9')
        for k in range(8): g(f'v_mov_b32 v{4+k}, s{84+2*k}')
        g(f'buffer_store_dwordx4 v[4:7], v1, s[{rWS}:{rWS+3}], 0 offen\nbuffer_store_dwordx4 v[8:11], v1, s[{rWS}:{rWS+3}], 0 offen offset:16')
    def prologue(s):
        g=s.g; o=s.o
        g(f's_cmp_ge_u32 s{sWG}, 256\ns_cbranch_scc1 END')
        g('s_load_dwordx16 s[16:31], s[0:1], 0\ns_load_dwordx16 s[32:47], s[0:1], 64\ns_load_dwordx2 s[48:49], s[0:1], 128')
        if o.stamps:
            for k in range(1,8): g(f's_mov_b32 s{84+2*k}, 0')
        s.stamp(0)
        g('v_lshrrev_b32 v1, 6, v0\nv_and_b32 v0, 63, v0')
        g(f'v_readfirstlane_b32 s{sWAVE}, v1')
        g(f's_and_b32 s9, s{sWG}, 7\ns_lshr_b32 s10, s{sWG}, 3')
        g(f's_lshr_b32 s11, s9, 2\ns_lshl_b32 s11, s11, 3\ns_and_b32 s12, s10, 7\ns_add_u32 s{sI}, s11, s12')
        g(f's_and_b32 s11, s9, 3\ns_lshl_b32 s11, s11, 2\ns_lshr_b32 s12, s10, 3\ns_add_u32 s{sJ}, s11, s12')
        if o.rot:
            g(f's_mul_i32 s11, s{sJ}, 3\ns_add_u32 s11, s11, s{sI}\ns_mul_i32 s12, s11, 205\ns_lshr_b32 s12, s12, 11\ns_mul_i32 s12, s12, 10\ns_sub_u32 s{sKB0}, s11, s12')
        else: raise NotImplementedError
        if o.g2map==0:
            g(f's_lshl_b32 s11, s9, 2\ns_and_b32 s12, s10, 3\ns_add_u32 s{sTI}, s11, s12\ns_lshr_b32 s{sDJ}, s10, 2')
        else:
            g(f's_lshr_b32 s11, s9, 1\ns_lshl_b32 s11, s11, 3\ns_and_b32 s12, s10, 7\ns_add_u32 s{sTI}, s11, s12')
            g(f's_and_b32 s11, s9, 1\ns_lshl_b32 s11, s11, 2\ns_lshr_b32 s12, s10, 3\ns_add_u32 s{sDJ}, s11, s12')
        g(f's_cmp_lt_u32 s{sWAVE}, 4\ns_cbranch_scc1 CPATH')
    VX,VW=2,6
    def loader_setup(s):
        g=s.g; VX,VW=s.VX,s.VW
        g(f's_sub_u32 s14, s{sWAVE}, 4')
        g('s_lshl_b32 s12, s14, 12\ns_mul_i32 s13, s14, 3072'); g(f's_add_u32 s13, s13, {WOFF}')
        g(f's_lshl_b32 s9, s{sI}, 7\ns_lshl_b32 s10, s14, 5\ns_add_u32 s9, s9, s10\ns_mul_i32 s9, s9, 1280')
        g('v_lshrrev_b32 v10, 3, v0\nv_mul_u32_u24 v10, 1280, v10\nv_add_u32 v10, s9, v10')
        g('v_and_b32 v11, 7, v0\nv_lshrrev_b32 v12, 4, v0\nv_xor_b32 v11, v11, v12')
        g(f'v_lshl_add_u32 v{VX}, v11, 4, v10')
        g('v_xor_b32 v11, 4, v11'); g(f'v_lshl_add_u32 v{VX+1}, v11, 4, v10\nv_add_u32 v{VX+1}, {8*1280-1024}, v{VX+1}')
        g(f'v_add_u32 v{VX+2}, {16*1280-2048}, v{VX}\nv_add_u32 v{VX+3}, {16*1280-2048}, v{VX+1}')
        g(f's_mul_i32 s9, s14, {16*3072}\ns_mul_i32 s10, s{sJ}, 192\ns_add_u32 s9, s9, s10')
        for q in range(3):
            g(f'v_add_u32 v10, {64*q}, v0\nv_mul_u32_u24 v11, 171, v10\nv_lshrrev_b32 v11, 11, v11')
            g(f'v_mul_u32_u24 v11, {3072-192}, v11\nv_lshl_add_u32 v11, v0, 4, v11\nv_add_u32 v{VW+q}, s9, v11')
        g(f's_mov_b32 s{sKB}, s{sKB0}')
        g('s_waitcnt lgkmcnt(0)')
        srd(g,rX,pU,2621440); srd(g,rWG,pWG,1966080); srd(g,rWU,pWU,1966080); srd(g,rWS,pWS,WS_END)
    def stage(s,st):
        VX,VW=s.VX,s.VW; b=(st%3)*STAGE; t=('st',st)
        G_=[]
        x=lambda q:('vm',f'buffer_load_dwordx4 v{VX+q}, s[{rX}:{rX+3}], s{sXO} offen offset:{1024*q} lds',t)
        w=lambda r,q:('vm',f'buffer_load_dwordx4 v{VW+q}, s[{r}:{r+3}], s{sWO} offen offset:{1024*q} lds',t)
        G_.append([('i',f's_add_u32 m0, s12, {b}\ns_lshl_b32 s{sXO}, s{sKB}, 7'),x(0)])
        G_+= [[x(1)],[x(2)],[x(3)]]
        G_.append([('i',f's_add_u32 m0, s13, {b}\ns_mul_i32 s{sWO}, s{sKB}, 196608'),w(rWG,0)])
        G_+= [[w(rWG,1)],[w(rWG,2)]]
        G_.append([('i',f's_add_u32 m0, s13, {b+UPOFF}\ns_add_u32 s{sKB}, s{sKB}, 1'),w(rWU,0)])
        G_+= [[w(rWU,1)],[w(rWU,2),('i',f's_cmp_eq_u32 s{sKB}, 10\ns_cselect_b32 s{sKB}, 0, s{sKB}')]]
        return G_
    def flat(s,G_): return [it for grp in G_ for it in grp]
    def spin(s,load,cmp_,mask):
        g=s.g; a=s.L('SP'); b=s.L('SX')
        g('s_mov_b32 s15, 0'); g.lab(a); g(load); g('s_waitcnt vmcnt(0)'); g(cmp_)
        g(f's_add_u32 s15, s15, 1\ns_cmp_gt_u32 s15, {SPIN}\ns_cbranch_scc1 {b}\ns_cmp_eq_u64 vcc, {mask}\ns_cbranch_scc0 {a}'); g.lab(b)
    def arrive_h(s,va,vb):
        g=s.g; l=s.L('HA')
        g(f's_mov_b64 exec, 1\nv_mov_b32 v{va}, {L_SY}\nv_mov_b32 v{vb}, 1\nds_add_rtn_u32 v{va}, v{va}, v{vb}\ns_waitcnt lgkmcnt(0)')
        g(f'v_readfirstlane_b32 s9, v{va}\ns_lshl_b32 s10, s{sI}, 7\ns_lshl_b32 s11, s{sJ}, 2\ns_cmp_eq_u32 s9, 4\ns_cbranch_scc0 {l}')
        g(f's_add_u32 s10, s10, s11\ns_add_u32 s10, s10, {FL_H}\nv_mov_b32 v{va}, s10')
        g(f'buffer_store_dword v{vb}, v{va}, s[{rWS}:{rWS+3}], 0 offen sc1'); g.lab(l); g('s_mov_b64 exec, -1')
    from gen_x import xpaths, kgen_chunk, kgen_expand, conv, x3path, cmul, warm
    from gen_c import cpath, gemm1, gemm2, final
    def build(s):
        g=s.g
        s.prologue(); s.xpaths(); s.cpath()
        g.lab('END'); g('s_endpgm')
        bad=check(g.L)
        for b in bad: print('HAZARD',b,file=sys.stderr)
        ref=open(os.path.join(os.path.dirname(os.path.abspath(__file__)),'..','cdna_kernels',NAME+'.s.ref')).read()
        hdr=ref[:ref.index('; Override launch')]
        hdr+='; generated by gen/gen.py: one persistent launch, 256 workgroups x 8 waves (4 GEMM waves + 4 loader/SSM waves)\n'
        hdr+='; @launch grid=(256,1,1) block=(512,1,1) lds=163840\n'
        hdr+=f'.amdgcn_target "amdgcn-amd-amdhsa--gfx950"\n.text\n.globl {NAME}_kernel\n.p2align 8\n.type {NAME}_kernel,@function\n{NAME}_kernel:\n'
        ftr=ref[ref.index('.section .rodata'):]
        return hdr+g.text()+ftr, len(bad)
def make(**kw):
    o=Opt(); o.stamps=False; o.rot=1; o.g2map=0; o.pk=1; o.prio=1; o.prio2=1; o.prio3=3; o.mgap=8; o.w0=12; o.w8=12; o.w9=8; o.dfrac=75; o.warm=0
    for k,x in kw.items(): setattr(o,k,x)
    return Gen(o).build()
if __name__=='__main__':
    kw={}
    out=sys.argv[1]
    for a in sys.argv[2:]:
        k,x=a.split('='); kw[k]=int(x)
    t,nb=make(**kw)
    open(out,'w').write(t)
    print('wrote',out,len(t.split('\n')),'lines, hazards:',nb)
```

```python
from asmlib import G, v, s_, check
NAME='gated_mix__ssm_conv_s4__glu_gated_bilinear__prompt'
WS_H=0; WS_UT=0x600000+128; ROWS=4224; WS_YT=0x900000; WS_G=0xC00000; WS_FL=0xC10000
FL_UT=WS_FL; FL_H=WS_FL+10*128; FL_Y=WS_FL+26*128; FL_WP=WS_FL+66*128; NFL=74
WS_ST=0xC20000; WS_WP=0xD00000; WS_END=0xF00000
STAGE=40992; WOFF=16384; UPOFF=12320
SLOT=lambda st:((st+1)%3)*STAGE
L_TMP=3*STAGE
L_U=2*STAGE
L_GW=131968; L_G=L_GW+2048
L_KS=137216
L_SY=L_KS+3*8704
RS=lambda r:(r>>1)*STAGE+(r&1)*5120
assert L_U+3*16640<=L_GW and L_G+256<=L_KS and L_SY+64<=163840 and L_U%16==0
SPIN=20000
sWG,sWAVE,sI,sJ,sKB0,sTI,sDJ=2,3,4,5,6,7,8
pU,pAR,pAI,pBR,pBI,pCR,pCI,pLDT,pDS,pWG,pWU,pWD,pGW,pOUT,pDBG,pWS=16,18,20,22,24,26,28,30,32,36,38,40,42,44,46,48
rX,rWG,rWU,rWD,rWS,rOUT,rGW=52,56,60,64,68,72,72
sKB,sXO,sWO,sD=80,81,82,83
sP=101
class Opt: pass
def srd(g,r,p,n):
    g(f's_mov_b32 s{r}, s{p}\ns_mov_b32 s{r+1}, s{p+1}\ns_mov_b32 s{r+2}, {n}\ns_mov_b32 s{r+3}, 0x20000')
def emit(g,items):
    for it in items:
        k=it[0]
        if k=='i': g(it[1])
        elif k=='vm': g.vmem(it[1],it[2])
        elif k=='lds': g.lds(it[1],it[2] if len(it)>2 else None)
        elif k=='blk': emit(g,it[1])
        elif k=='wvm': g.wait_vm(it[1])
        elif k=='wlg': g.wait_lg(it[1])
def merge(main,side,first=0,last=None):
    if last is None: last=len(main)
    out=[]; n=len(side); k=0
    for i,it in enumerate(main):
        while k<n and i>=first+(last-first)*k//n: out+=side[k]; k+=1
        out.append(it)
    while k<n: out+=side[k]; k+=1
    return out
```

```python
from consts import *
ACC=16; FR=[112,132]; VXA=2; VWA=6; VH=7
def cpath(s):
    g=s.g; o=s.o; g.reset(); g.lab('CPATH')
    if o.prioc: g(f's_setprio {o.prioc}')
    s.loader_setup()
    for st in range(3): emit(g,s.flat(s.stage(st))); s.dstamp(4,2+st)
    g(f's_lshr_b32 s12, s{sWAVE}, 1\ns_and_b32 s13, s{sWAVE}, 1')
    g('v_and_b32 v10, 31, v0\nv_lshlrev_b32 v10, 7, v10\ns_lshl_b32 s9, s12, 13\nv_add_u32 v10, s9, v10')
    g('v_bfe_u32 v11, v0, 1, 3\nv_lshrrev_b32 v12, 5, v0\nv_xor_b32 v11, v11, v12')
    g(f'v_lshl_add_u32 v{VXA}, v11, 4, v10')
    for ks in(1,2,3): g(f'v_xor_b32 v{VXA+ks}, {32*ks}, v{VXA}')
    for ks in range(4): g(f'v_add_u32 v{VXA+ks}, {SLOT(0)}, v{VXA+ks}')
    g(f'v_bfe_u32 v10, v0, 4, 1\nv_mul_u32_u24 v13, {UPOFF}, v10\nv_bfe_u32 v11, v0, 2, 2\nv_lshl_add_u32 v11, v12, 3, v11')
    g(f'v_mul_u32_u24 v11, 192, v11\nv_add_u32 v13, v13, v11\nv_and_b32 v11, 3, v0\nv_lshl_add_u32 v13, v11, 3, v13')
    g(f's_mul_i32 s9, s13, 96\ns_add_u32 s9, s9, {WOFF+SLOT(0)}\nv_add_u32 v{VWA}, s9, v13')
    g(f'v_and_b32 v11, 15, v0\nv_lshlrev_b32 v11, 4, v11\nv_lshl_add_u32 v11, v12, 8, v11\nv_lshl_add_u32 v{VH}, v10, 10, v11')
    srd(g,rWD,pWD,1966080); srd(g,rOUT,pOUT,2621440)
    g(f's_lshr_b32 s9, s{sWG}, 3\ns_lshr_b32 s10, s9, 3\ns_lshl_b32 s10, s10, 2\ns_add_u32 s10, s10, s{sWAVE}\ns_lshl_b32 s11, s{sI}, 4\ns_add_u32 s10, s10, s11\ns_mul_i32 s10, s10, {8*1280}\ns_add_u32 s10, s10, 256')
    g('v_lshrrev_b32 v10, 3, v0\nv_and_b32 v11, 7, v0\nv_mul_u32_u24 v12, 1280, v10\nv_lshl_add_u32 v12, v11, 7, v12\nv_add_u32 v250, s10, v12')
    g(f's_lshl_b32 s9, s9, 1\ns_add_u32 s9, s9, s12\ns_mul_i32 s9, s9, {8*3072}\ns_lshr_b32 s10, s{sJ}, 2\ns_mul_i32 s10, s10, 768\ns_add_u32 s9, s9, s10\ns_add_u32 s9, s9, {128*3072}')
    g('v_min_u32 v11, 5, v11\nv_mul_u32_u24 v12, 3072, v10\nv_lshl_add_u32 v12, v11, 7, v12\nv_add_u32 v251, s9, v12')
    g(f's_cmp_eq_u32 s13, 0\ns_cselect_b64 s[50:51], s[{pWG}:{pWG+1}], s[{pWU}:{pWU+1}]')
    g(f's_lshl_b32 s9, s{sWG}, 2\ns_add_u32 s9, s9, s{sWAVE}\ns_mul_i32 s9, s9, 1920\nv_min_u32 v12, 14, v0\nv_lshl_add_u32 v249, v12, 7, s9')
    if o.touch: g.vmem('global_load_dword v252, v251, s[50:51]'); g.vmem(f'global_load_dword v253, v250, s[{pU}:{pU+1}]')
    if o.twd: g.vmem(f'global_load_dword v254, v249, s[{pWD}:{pWD+1}]')
    s.dstamp(4,5)
    for r in range(96): g(f'v_mov_b32 v{ACC+r}, 0')
    g.wait_vm(('st',2)); s.dstamp(4,6)
    s.gemm1(); s.gemm2(); s.final()
def touch(g): g(f'global_load_dword v252, v251, s[50:51]\nglobal_load_dword v253, v250, s[{pU}:{pU+1}]')
def gemm1(s):
    g=s.g; o=s.o
    def reads(ks,F):
        x=lambda tj:(f'ds_read_b128 {v(F+12+4*tj,4)}, v{VXA+ks} offset:{4096*tj}',('x',F,tj))
        w=lambda fi,h:(f'ds_read_b64_tr_b16 {v(F+4*fi+2*h,2)}, v{VWA} offset:{ks*3072+h*768+fi*32}',('w',F,fi))
        return [x(0),w(0,0),w(0,1),x(1),w(1,0),w(1,1),w(2,0),w(2,1)]
    def mf(F,fi,tj):
        g.wait_lg(('w',F,fi)); g.wait_lg(('x',F,tj)); a=ACC+16*(3*tj+fi)
        g(f'v_mfma_f32_32x32x16_bf16 {v(a,16)}, {v(F+4*fi,4)}, {v(F+12+4*tj,4)}, {v(a,16)}')
    g(f's_mov_b32 s80, 0\ns_mov_b32 s81, 1\ns_mov_b32 s83, {-2*STAGE}')
    g('s_barrier'); s.stamp(1)
    for t,tag in reads(0,FR[0]): g.lds(t,tag)
    st0=list(g.lg)
    g.lab('G1')
    g(f's_cmp_eq_u32 s81, 2\ns_cselect_b32 s82, s83, {STAGE}\ns_cselect_b32 s81, -1, s81\ns_add_u32 s81, s81, 1')
    order=[(0,0),(0,1),(1,0),(1,1),(2,0),(2,1)]
    for ks in range(4):
        F=FR[ks&1]; R=reads((ks+1)&3,FR[(ks+1)&1])
        if ks==3:
            g.wait_lg()
            if o.diag and o.diag<4: g(f's_sub_u32 s9, s80, {o.d0}\ns_lshl_b32 s9, s9, 1\ns_sub_u32 s10, s9, 2\ns_cmp_lt_u32 s10, 14\ns_cselect_b32 m0, s9, 16\ns_nop 0\ns_movreld_b32 s84, s100\n'+('s_memtime' if o.clk else 's_memrealtime')+' s[100:101]')
        for k,(fi,tj) in enumerate(order):
            mf(F,fi,tj)
            if ks==3 and k==0: g('s_barrier')
            if k<4:
                for t,tag in R[2*k:2*k+2]: g.lds(t,tag)
            if k==4:
                if ks==0: g(f'v_add_u32 v{VXA}, s82, v{VXA}\nv_add_u32 v{VXA+1}, s82, v{VXA+1}')
                if ks==1: g(f'v_add_u32 v{VXA+2}, s82, v{VXA+2}')
                if ks==2: g(f'v_add_u32 v{VXA+3}, s82, v{VXA+3}\nv_add_u32 v{VWA}, s82, v{VWA}')
                if ks==3: g('s_add_u32 s80, s80, 1\ns_cmp_lt_u32 s80, 10')
    assert g.lg==st0
    g('s_cbranch_scc1 G1')
    s.stamp(2)
    g(f's_lshl_b32 s9, s{sI}, 1\ns_add_u32 s9, s9, s12\ns_mul_i32 s9, s9, 196608')
    g(f's_mul_i32 s10, s{sJ}, 6\ns_mul_i32 s11, s13, 3\ns_add_u32 s10, s10, s11')
    for fi in range(3):
        g(f's_add_u32 s11, s10, {fi}\ns_lshr_b32 s15, s11, 1\ns_lshl_b32 s15, s15, 12\ns_and_b32 s11, s11, 1\ns_lshl_b32 s11, s11, 9\ns_add_u32 s11, s11, s15\ns_add_u32 s{80+fi}, s11, s9')
    for fi,tj in order:
        a=ACC+16*(3*tj+fi)
        for r in range(8): g(f'v_mul_f32 v{a+r}, v{a+r}, v{a+r+8}')
        for r in range(4): g(f'v_cvt_pk_bf16_f32 v{a+r}, v{a+2*r}, v{a+2*r+1}')
        g.vmem(f'buffer_store_dwordx4 {v(a,4)}, v{VH}, s[{rWS}:{rWS+3}], s{80+fi} offen offset:{2048*tj} sc1','hst')
    g.wait_lg()
VL=1; VD=2; VAR=7; A2=12; AF0=92
def gemm2(s):
    g=s.g; o=s.o; NA=o.na; HB=AF0+20*NA; NH=(256-HB)//16; AF=lambda st:AF0+20*(st%NA); HF=lambda st,tau:HB+16*(st%NH)+4*tau
    g(f's_mul_i32 s12, s{sWAVE}, 10240\ns_mul_i32 s13, s{sWAVE}, 491520\ns_mul_i32 s9, s{sDJ}, 160\ns_add_u32 s13, s13, s9')
    g(f'v_lshlrev_b32 v{VL}, 4, v0')
    for q in range(5):
        g(f'v_add_u32 v8, {64*q}, v0\nv_mul_u32_u24 v8, 6554, v8\nv_lshrrev_b32 v8, 16, v8\nv_mul_u32_u24 v8, 1120, v8\nv_add_u32 v{VD+q}, v8, v{VL}')
    g(f'v_add_u32 v{VD+4}, 4096, v{VD+4}')
    def wd(st):
        b=RS(st&3); t=('wd',st); d=lambda q,off:('vm',f'buffer_load_dwordx4 v{VD+q}, s[{rWD}:{rWD+3}], s13 offen offset:{off} lds',t)
        return [[('i',f's_add_u32 m0, s12, {b}\ns_nop 0'),d(0,0)],[d(1,1024)],[d(2,2048)],[d(3,3072),('i',f's_add_u32 m0, s12, {b+4096}')],
                [('i','s_nop 0'),d(4,0),('i','s_add_u32 s13, s13, 40960')]]
    def rd(st):
        return [[('lds',f'ds_read_b64_tr_b16 {v(AF(st)+4*n+2*h,2)}, v{VAR} offset:{RS(st&3)+8*n+1280*h}',('a',st))] for n in range(5) for h in range(2)]
    for st in range(o.n1): emit(g,s.flat(wd(st)))
    g(f's_mul_i32 s14, s{sTI}, 196608\ns_mul_i32 s9, s{sWAVE}, 49152\ns_add_u32 s14, s14, s9')
    for tau in range(4): g(f's_add_u32 s9, s{sWAVE}, {tau}\ns_and_b32 s9, s9, 3\ns_lshl_b32 s9, s9, 10\ns_add_u32 s{80+tau}, s9, s14')
    g('v_bfe_u32 v8, v0, 2, 2\nv_bfe_u32 v9, v0, 4, 1\nv_lshl_add_u32 v8, v9, 2, v8\nv_lshrrev_b32 v9, 5, v0\nv_lshl_add_u32 v8, v9, 4, v8')
    g(f'v_mul_u32_u24 v8, 160, v8\nv_and_b32 v9, 3, v0\nv_mul_u32_u24 v9, 40, v9\nv_add3_u32 v{VAR}, v8, v9, s12')
    g.wait_vm('hst'); s.arrive_h(8,9); s.stamp(3)
    for st in range(o.n1,4): emit(g,s.flat(wd(st)))
    for st in range(NA):
        g.wait_vm(('wd',st)); emit(g,s.flat(rd(st))); g.wait_lg(('a',st)); emit(g,s.flat(wd(st+4)))
    s.dstamp(5,0)
    g(f's_lshl_b32 s10, s{sWAVE}, 2\ns_lshl_b32 s10, 15, s10\nv_mov_b32 v8, {L_SY+4}\ns_mov_b32 s15, 0')
    g.lab('HW'); g('ds_read_b32 v9, v8\ns_waitcnt lgkmcnt(0)\nv_readfirstlane_b32 s9, v9')
    g(f's_add_u32 s15, s15, 1\ns_cmp_gt_u32 s15, {SPIN*8}\ns_cbranch_scc1 HX\ns_and_b32 s9, s9, s10\ns_cmp_eq_u32 s9, s10\ns_cbranch_scc0 HW'); g.lab('HX')
    if o.prio: g(f's_setprio {o.prio2}')
    s.stamp(4); s.dstamp(5,1)
    def hl(st,tau):
        return [('vm',f'buffer_load_dwordx4 {v(HF(st,tau),4)}, v{VL}, s[{rWS}:{rWS+3}], s{80+tau} offen sc1',('h',st,tau)),('i',f's_add_u32 s{80+tau}, s{80+tau}, 4096')]
    for st in range(NH):
        for tau in range(4): emit(g,hl(st,tau))
    s.dstamp(5,2)
    for st in range(12):
        main=[]
        for tau in range(4):
            for n in range(5):
                a=A2+20*tau+4*n; c=v(a,4) if st else '0'
                it=[]
                if n==0: it.append(('wvm',('h',st,tau)))
                it.append(('i',f'v_mfma_f32_16x16x32_bf16 {v(a,4)}, {v(AF(st)+4*n,4)}, {v(HF(st,tau),4)}, {c}'))
                if n==4 and st+NH<12: it+=hl(st+NH,tau)
                main.append(it)
        side=[]; k=st-1+NA
        if st>=2 and k+3<12:
            W=wd(k+3); W[0]=[('wlg',('a',k-1))]+W[0]; side+=W
        if st>=1 and k<12:
            R=rd(k); R[0]=[('wvm',('wd',k))]+R[0]; side+=R
        g.wait_lg(('a',st))
        for k,it in enumerate(main):
            emit(g,it)
            if k<len(side): emit(g,side[k])
        if st in(0,3,7): s.dstamp(5,3+(st+1)//4)
    s.stamp(5); s.dstamp(5,6)
Y=AF0; GG=AF0+10; T_=AF0+12; O_=AF0+20; YA=AF0+32; P_=192
def final(s):
    g=s.g; o=s.o
    g(f'v_add_u32 v8, s12, v{VL}')
    for tau in range(1,4):
        g(f's_sub_u32 s9, s{sWAVE}, {tau}\ns_and_b32 s9, s9, 3\ns_mul_i32 s10, s9, 10240\nv_add_u32 v{1+tau}, s10, v{VL}')
        if tau==3: g('s_nop 0')
        for n in range(5): g.lds(f'ds_write_b128 v8, {v(A2+20*tau+4*n,4)} offset:{RS(tau-1)+n*1024}')
    g(f'v_lshrrev_b32 v9, 4, v0\nv_mul_u32_u24 v9, 20, v9\nv_bfe_u32 v10, v0, 2, 2\nv_add_u32 v10, v9, v10\nv_and_b32 v11, 3, v0')
    g(f's_lshl_b32 s9, s{sWAVE}, 5\ns_add_u32 s10, s9, {L_KS+4608}\nv_lshl_add_u32 v11, v11, 3, s10\nv_lshl_add_u32 v11, v10, 7, v11\ns_movk_i32 s10, 4608')
    for n in range(5): g(f'v_add_u32 v5, {4*n}, v10\nv_lshrrev_b32 v5, 5, v5\nv_mad_u32_u24 v{YA+n}, v5, s10, v11')
    g(f'v_and_b32 v11, 15, v0\ns_lshl_b32 s9, s9, 1\ns_add_u32 s10, s9, {L_G}\nv_lshl_add_u32 v6, v11, 2, s10')
    g(f'v_mul_u32_u24 v11, 1280, v11\nv_lshl_add_u32 v7, v9, 1, v11')
    g(f's_lshl_b32 s9, s{sTI}, 2\ns_add_u32 s9, s9, s{sWAVE}\ns_mul_i32 s9, s9, 20480\ns_mul_i32 s10, s{sDJ}, 160\ns_add_u32 s11, s9, s10')
    g.wait_lg(); g('s_barrier'); s.stamp(6)
    g.lds(f'ds_read_b32 v{GG}, v6','g')
    for n in range(5):
        g.lds(f'ds_read_b64_tr_b16 {v(Y+2*n,2)}, v{YA+n} offset:{512*n}',('y',n))
        for tau in range(1,4): g.lds(f'ds_read_b128 {v(P_+12*n+4*(tau-1),4)}, v{1+tau} offset:{RS(tau-1)+n*1024}',('p',n))
        if n>=2: fin(g,n-2)
    fin(g,3); fin(g,4)
    s.stamp(7); s.dump_stamps((0,[(k,1+k) for k in range(8)])); g('s_endpgm')
def fin(g,n):
    g.wait_lg(('p',n)); a=A2+4*n; O=O_; T=T_; p=P_+12*n
    for e in range(4): g(f'v_add_f32 v{a+e}, v{a+e}, v{p+e}\nv_add_f32 v{p+4+e}, v{p+4+e}, v{p+8+e}')
    for e in range(4):
        g(f'v_lshlrev_b32 v{T+e}, 16, v{Y+2*n+e//2}' if e%2==0 else f'v_and_b32 v{T+e}, 0xffff0000, v{Y+2*n+e//2}')
        g(f'v_add_f32 v{a+e}, v{a+e}, v{p+4+e}')
    for e in range(4): g(f'v_sub_f32 v{T+e}, v{T+e}, v{a+e}')
    for e in range(4): g(f'v_fmac_f32 v{a+e}, v{GG}, v{T+e}')
    g(f'v_cvt_pk_bf16_f32 v{O+2*n}, v{a}, v{a+1}\nv_cvt_pk_bf16_f32 v{O+2*n+1}, v{a+2}, v{a+3}')
    if n in(1,3): g.vmem(f'buffer_store_dwordx4 {v(O+2*n-2,4)}, v7, s[{rOUT}:{rOUT+3}], s11 offen offset:{8*(n-1)}')
    if n==4: g.vmem(f'buffer_store_dwordx2 {v(O+8,2)}, v7, s[{rOUT}:{rOUT+3}], s11 offen offset:32')
```

```python
from consts import *
I=lambda t:('i',t)
SA=10; FA=18; RAW=20; LDT,DSK=32,33; DT,DTL,DTP=34,35,36
B_,C_,ZR,ZI,CC=38,40,42,43,44; E1,E8,E256,E512,E1024=46,50,54,58,62; TM=66; CVT=70; P0=80
BF,AFR,KA=128,160,192
sKS,sUB,sT0,sT1=34,35,50,51
def cmul(s,d,a,b):
    if s.o.pk:
        return [I(f'v_pk_mul_f32 {v(d,2)}, {v(a,2)}, {v(b,2)} op_sel:[0,0] op_sel_hi:[0,1]'),
                I(f'v_pk_fma_f32 {v(d,2)}, {v(a,2)}, {v(b,2)}, {v(d,2)} op_sel:[1,1,0] op_sel_hi:[1,0,1] neg_lo:[0,1,0]')]
    return [I(f'v_mul_f32 v{d}, v{a}, v{b}'),I(f'v_mul_f32 v{d+1}, v{a}, v{b+1}'),
            I(f'v_fma_f32 v{d}, -v{a+1}, v{b+1}, v{d}'),I(f'v_fmac_f32 v{d+1}, v{a+1}, v{b}')]
def Ex(dst,x,TM,ZR):
    L=[]
    if x!=1:
        L+=[I(f'v_mul_f32 v{TM}, {hex(fb(x))}, v{ZR}'),I(f'v_mul_f32 v{TM+1}, {hex(fb(x))}, v{ZR+1}'),I(f'v_fract_f32 v{TM+1}, v{TM+1}')]; m=TM
    else: L+=[I(f'v_fract_f32 v{TM+1}, v{ZR+1}')]; m=ZR
    L+=[I(f'v_exp_f32 v{TM}, v{m}'),I(f'v_cos_f32 v{dst}, v{TM+1}'),I(f'v_sin_f32 v{dst+1}, v{TM+1}'),
        I(f'v_mul_f32 v{dst}, v{dst}, v{TM}'),I(f'v_mul_f32 v{dst+1}, v{dst+1}, v{TM}')]
    return L
def fb(x):
    import struct; return struct.unpack('<I',struct.pack('<f',x))[0]
class Rows:
    def __init__(s,L): s.L=L; s.pend={}
    def put(s,row,r):
        k=row>>2
        if k in s.pend:
            r0,row0=s.pend.pop(k)
            s.L.append(('lds',f'ds_write2_b32 v{SA+k}, v{r0}, v{r} offset0:{68*(row0&3)} offset1:{68*(row&3)}'))
        else: s.pend[k]=(r,row)
    def flush(s):
        for k,(r,row) in s.pend.items(): s.L.append(('lds',f'ds_write_b32 v{SA+k}, v{r} offset:{272*(row&3)}'))
        s.pend={}
CH=50; HH=54; ONE=65; KSC=37; EA,EB=68,70; RW=80
def unp(dst,a,ch): return I([f'v_lshlrev_b32 v{dst}, 16, v{RAW+a}',f'v_and_b32 v{dst}, 0xffff0000, v{RAW+a}',f'v_lshlrev_b32 v{dst}, 16, v{RAW+6+a}'][ch])
def hmul(d,a,b,conj):
    n1,n2=(' neg_hi:[0,1]','') if conj else ('',' neg_lo:[0,1,0]')
    return [I(f'v_pk_mul_f16 v{d}, v{a}, v{b} op_sel:[0,0] op_sel_hi:[0,1]{n1}'),I(f'v_pk_fma_f16 v{d}, v{a}, v{b}, v{d} op_sel:[1,1,0] op_sel_hi:[1,0,1]{n2}')]
def kgen_pre(s):
    L=[('wvm','par'),I(f'v_lshlrev_b32 v{LDT}, 16, v{LDT}'),I(f'v_mul_f32 v{LDT}, {hex(fb(1.4426950408889634))}, v{LDT}'),I(f'v_exp_f32 v{LDT}, v{LDT}'),I(f'v_mov_b32 v{ONE}, 0x3c00'),
       I(f'v_cvt_pk_bf16_f32 v{DT}, v{LDT}, v{LDT}'),I(f'v_lshlrev_b32 v{DT}, 16, v{DT}'),
       I(f'v_mul_f32 v{DTL}, {hex(fb(1.4426950408889634))}, v{DT}'),I(f'v_mul_f32 v{DTP}, {hex(fb(0.15915494309189535))}, v{DT}')]
    for ch in range(3):
        L+=[unp(d,2+a,ch) for a,d in enumerate([B_,B_+1,C_,C_+1])]+s.cmul(CC+2*ch,C_,B_)
        L.append(I(f'v_max3_f32 v{TM}, |v{CC+2*ch}|, |v{CC+2*ch+1}|, '+(f'v{TM}' if ch else '0')))
    t=''
    for c in['quad_perm:[1,0,3,2]','quad_perm:[2,3,0,1]','row_half_mirror','row_mirror']: t+=f's_nop 1\nv_max_f32_dpp v{TM}, v{TM}, v{TM} {c} row_mask:0xf bank_mask:0xf\n'
    t+=f's_nop 0\nv_readlane_b32 s9, v{TM}, 0\nv_readlane_b32 s10, v{TM}, 16\nv_readlane_b32 s11, v{TM}, 32\nv_readlane_b32 s15, v{TM}, 48\n'
    t+='s_max_u32 s9, s9, s10\ns_max_u32 s11, s11, s15\ns_max_u32 s9, s9, s11\ns_lshr_b32 s9, s9, 23\ns_max_u32 s9, s9, 11\ns_min_u32 s9, s9, 253\n'
    t+=f's_sub_u32 s10, 264, s9\ns_lshl_b32 s10, s10, 23\ns_sub_u32 s9, s9, 10\ns_lshl_b32 s9, s9, 23\nv_mul_f32 v{KSC}, s9, v{DT}\n'
    for k in range(6): t+=f'v_mul_f32 v{CC+k}, s10, v{CC+k}\n'
    L.append(I(t))
    for ch in range(3): L+=[unp(ZS[ch],0,ch),unp(ZS[ch]+1,1,ch),I(f'v_mul_f32 v{ZS[ch]}, v{ZS[ch]}, v{DTL}'),I(f'v_mul_f32 v{ZS[ch]+1}, v{ZS[ch]+1}, v{DTP}')]
    for ch in range(3): L.append(I(f'v_cvt_pk_f16_f32 v{CH+ch}, v{CC+2*ch}, -v{CC+2*ch+1}'))
    return L
ZS=[42,112,114]
def units(L,R,U,ilv):
    i=0
    while i<len(U):
        u=U[i]
        if u[0] is None: R.put(u[4],u[1]); i+=1; continue
        grp=[u]
        while ilv and len(grp)<=ilv and i+len(grp)<len(U):
            n=U[i+len(grp)]
            if n[0] is None or n[1] in [x[0] for x in grp]: break
            grp.append(n)
        ms=[hmul(*x[:4]) for x in grp]
        L+=[m[0] for m in ms]+[m[1] for m in ms]
        for x in grp:
            if x[4] is not None: R.put(x[4],x[0])
        i+=len(grp)
def kgen_chunk(s,ch):
    h=lambda x:HH+x.bit_length()-1; C2=[]
    for x0,n,a,b,t in[(1,4,68,70,66),(32,5,74,76,72)]:
        c=Ex(a,x0,t,ZS[ch]); c.append(I(f'v_cvt_pk_f16_f32 v{h(x0)}, v{a}, v{a+1}'))
        for k in range(1,n+1):
            c+=[I(f'v_mul_f32 v{t}, v{a+1}, v{a+1}'),I(f'v_add_f32 v{t+1}, v{a}, v{a}'),I(f'v_fma_f32 v{b}, v{a}, v{a}, -v{t}'),I(f'v_mul_f32 v{b+1}, v{t+1}, v{a+1}'),
                I(f'v_cvt_pk_f16_f32 v{h(x0<<k)}, v{b}, v{b+1}')]; a,b=b,a
        C2.append(c)
    H=merge(C2[1],[[x] for x in C2[0]]) if s.o.ilv else C2[0]+C2[1]
    R=Rows(H); rb={0:ONE}; U=[(None,ONE,0,0,0)]
    for j in range(1,32):
        hb=1<<(j.bit_length()-1)
        if j==hb: rb[j]=h(8*j); U.append((None,rb[j],0,0,j))
        else: rb[j]=RW+j; U.append((RW+j,rb[j-hb],h(8*hb),0,j))
    units(H,R,U,s.o.ilv)
    T=[]
    for k in range(8): T.append(('lds',f'ds_read_b128 {v(BF+4*k,4)}, v{FA} offset:{32*k}',('b',k)))
    R=Rows(T); row=lambda half,r:8*(r//4)+4*half+r%4
    P={0:CH+ch}; nx=[RW]; U=[(None,P[0],0,0,row(0,0))]
    def mk(x,y,r):
        d=nx[0]; nx[0]+=1; U.append((d,P[x-y],h(y),1,r)); P[x]=d
    for hi in range(1,8): mk(hi,1<<(hi.bit_length()-1),row(0,hi))
    mk(8,8,None)
    for n,k in enumerate([0,2,4,6,8]): mk(256+k,256,row(0,8+n))
    for n,k in enumerate([0,4,8]): mk(512+k,512,row(0,13+n))
    for n,k in enumerate([0,4,8]): mk(768+k,512,row(1,n))
    for m in range(4):
        for n,k in enumerate([0,8]): mk(1024+256*m+k,1024,row(1,3+2*m+n))
    units(T,R,U,s.o.ilv); R.flush()
    for k in range(8): T.append(('lds',f'ds_read_b128 {v(AFR+4*k,4)}, v{FA} offset:{32*k}',('a',k)))
    M=[]
    for k in range(8):
        c=v(KA,16) if (ch or k or s.o.kloop) else '0'
        t=f'v_mfma_f32_32x32x16_f16 {v(KA,16)}, {v(AFR+4*k,4)}, {v(BF+4*k,4)}, {c}'
        if s.o.mprio: t=f's_setprio 3\n{t}\ns_setprio {s.o.priox}'
        M.append([('wlg',('a',k)),I(t)])
    return H,T,M
def kgen_expand(s):
    L=[]; VE,VZ,t=10,11,12; X=BF; cv=lambda d,a,b:L.append(I(f'v_cvt_pk_bf16_f32 v{d}, v{a}, v{b}'))
    L+=[I(f'v_and_b32 v{t}, 31, v0'),I(f'v_lshlrev_b32 v{t}, 4, v{t}'),I(f's_add_u32 s9, s{sKS}, 496'),I(f'v_sub_u32 v{VE}, s9, v{t}'),
        I(f'v_add_u32 v{VZ}, s{sKS}, v{t}'),I(f'v_and_b32 v{t}, 1, v0'),I(f'v_cmp_eq_u32 vcc, 1, v{t}'),I(f'v_lshlrev_b32 v{DSK}, 16, v{DSK}')]
    for k in range(4): L.append(I(f'v_mov_b32 v{X+k}, 0'))
    L.append(I('s_nop 0'))
    for k in range(16): L.append(I(f'v_mul_f32 v{KA+k}, v{KA+k}, v{KSC}'))
    L.append(I(f's_mov_b64 exec, 1\nv_add_f32 v{KA}, v{KA}, v{DSK}\ns_mov_b32 exec_lo, -1'))
    n=[1]
    def chunk(e,base):
        x=X+4*n[0]; n[0]+=1
        for k in range(4): cv(x+k,e[7-2*k],e[6-2*k])
        L.append(('lds',f'ds_write_b128 v{VE}, {v(x,4)} offset:{2*(1792-base)}'))
    a=lambda r:KA+r
    L.append(('lds',f'ds_write_b128 v{VZ}, {v(X,4)} offset:4096'))
    chunk([a(r) for r in range(8)],0)
    chunk([a(8+k) for k in[0,0,1,2,2,2,3,4]],256)
    chunk([a(13+k) for k in[0,0,0,1,1,1,2,2]],512)
    L.append(I('s_mov_b32 exec_lo, 0\ns_mov_b32 exec_hi, -1'))
    chunk([a(k) for k in[0,0,0,1,1,1,2,2]],768)
    for m in range(4):
        z0,z8=a(3+2*m),a(4+2*m); L.append(I(f'v_cndmask_b32 v{t}, v{z0}, v{z8}, vcc'))
        chunk([z0,z0,z0,z0,t,z8,z8,z8],1024+256*m)
    L.append(I('s_mov_b64 exec, -1'))
    return L
UA,UO,UD=244,248,224
def xloop(s,role,pre=None,post=None,extra={}):
    g=s.g; o=s.o
    g('v_lshrrev_b32 v240, 4, v0\nv_bfe_u32 v241, v0, 2, 2\nv_lshl_add_u32 v241, v240, 3, v241\nv_lshlrev_b32 v241, 7, v241\nv_bfe_u32 v242, v0, 1, 1\nv_bfe_u32 v243, v0, 3, 1\nv_xor_b32 v242, v242, v243')
    g('v_bfe_u32 v243, v0, 4, 1\nv_lshl_add_u32 v242, v243, 2, v242\nv_lshl_add_u32 v241, v242, 4, v241\nv_and_b32 v242, 1, v0\nv_lshl_add_u32 v241, v242, 3, v241')
    for m in range(4): g(f'v_xor_b32 v242, {32*m}, v241\nv_add_u32 v{UA+m}, s80, v242')
    g(f'v_and_b32 v242, 15, v0\nv_mul_u32_u24 v242, {ROWS}, v242\ns_cmp_lt_u32 s{sJ}, 10\ns_cselect_b32 s9, 0, 0x40000000\nv_lshl_add_u32 v242, v240, 4, v242\nv_add_u32 v{UO}, s9, v242')
    for iv in range(9):
        if pre: pre(iv)
        if iv==o.utv:
            g(f's_min_u32 s9, s{sJ}, 9\ns_lshl_b32 s9, s9, 7\ns_mov_b32 m0, s80\ns_add_u32 s{sXO}, s{sKB0}, s9')
            for q in range(4): g.vmem(f'buffer_load_dwordx4 v{s.VX+q}, s[{rX}:{rX+3}], s{sXO} offen offset:{1024*q} lds','ut')
        st=s.stage(iv+2,role=='3') if 1<=iv<=7 else []
        ex=extra.get(iv,[])
        emit(g,merge(ex,st,0,len(ex)*o.dfrac//100) if ex else s.flat(st))
        if iv==o.utv+1:
            g(f's_mul_i32 s9, s{sJ}, {64*ROWS}\ns_lshl_b32 s10, s{sI}, 8\ns_add_u32 s9, s9, s10\ns_lshl_b32 s10, s14, 6\ns_add_u32 s9, s9, s10')
            g.wait_vm('ut')
            for db in range(4):
                for h in range(2): g.lds(f'ds_read_b64_tr_b16 {v(UD+4*db+2*h,2)}, v{UA+(db^h)} offset:{512*h}',('ut',db))
            for db in range(4):
                g(f's_add_u32 s10, s9, {WS_UT+16*db*ROWS}'); g.wait_lg(('ut',db))
                g.vmem(f'buffer_store_dwordx4 {v(UD+4*db,4)}, v{UO}, s[{rWS}:{rWS+3}], s10 offen sc1','uts')
        if post: post(iv)
        s.dstamp(1,iv); g.wait_vm(('st',iv+1))
        if iv==o.utv+2: g.wait_vm('uts')
        if post: post(100+iv)
        s.dstamp(2,iv); g('s_barrier'); s.dstamp(3,iv)
def xpaths(s):
    g=s.g; o=s.o; g.reset()
    if o.priox: g(f's_setprio {o.priox}')
    g(f's_and_b32 s14, s{sWAVE}, 3\ns_mul_i32 s80, s14, 8704\ns_add_u32 s80, s80, {L_KS+4608}')
    g(f's_cmp_eq_u32 s14, 3\ns_cbranch_scc1 X3PATH\ns_and_b32 s9, s{sWG}, 1\ns_add_u32 s10, s9, s14\ns_cmp_eq_u32 s10, 3\ns_cbranch_scc1 LOADONLY')
    g(f's_lshr_b32 s10, s{sWG}, 1\ns_mul_i32 s10, s10, 5\ns_mul_i32 s9, s9, 3\ns_add_u32 s10, s10, s9\ns_add_u32 s{sD}, s10, s14')
    g(f's_mul_i32 s9, s{sD}, 384\nv_lshl_add_u32 v14, v0, 2, s9\nv_lshl_add_u32 v15, v0, 1, s9\ns_lshl_b32 s9, s{sD}, 1\nv_mov_b32 v16, s9')
    g('s_waitcnt lgkmcnt(0)')
    g.vmem(f'global_load_ushort v{LDT}, v16, s[{pLDT}:{pLDT+1}]','par')
    for a,p in enumerate([pAR,pAI,pBR,pBI,pCR,pCI]):
        g.vmem(f'global_load_dword v{RAW+a}, v14, s[{p}:{p+1}]','par'); g.vmem(f'global_load_ushort v{RAW+6+a}, v15, s[{p}:{p+1}] offset:256','par')
    g.vmem(f'global_load_ushort v{DSK}, v16, s[{pDS}:{pDS+1}]','par')
    s.loader_setup()
    g(f's_sub_u32 s{sKS}, s80, 4608\ns_mul_i32 s{sUB}, s14, 16640\ns_add_u32 s{sUB}, s{sUB}, {L_U}')
    g(f'v_lshl_add_u32 v{SA}, v0, 2, s{sKS}')
    for k in range(1,8): g(f'v_add_u32 v{SA+k}, {1088*k}, v{SA}')
    g(f'v_and_b32 v{FA}, 31, v0\nv_mul_u32_u24 v{FA}, 272, v{FA}\nv_lshrrev_b32 v19, 5, v0\nv_lshlrev_b32 v19, 4, v19\nv_add3_u32 v{FA}, v{FA}, v19, s{sKS}')
    if o.diag==4: s.dstamp(4,2); g.wait_vm('par'); s.dstamp(4,3)
    main=kgen_pre(s); M=None
    if o.kloop:
        H,T,M=s.kgen_chunk(0)
        for k in range(16): g(f'v_mov_b32 v{KA+k}, 0')
        emit(g,main); g('s_mov_b32 s15, 0\ns_cmp_lg_u32 s15, 0'); g.lab('KL')
        Mb=[[m[0],I(f's_cbranch_scc0 KM{k}'),m[1],I(f'KM{k}:')] for k,m in enumerate(M)]
        body=merge(H,Mb,4,4+8*o.mgap)+T
        t=G(); emit(t,body); g.lg=list(t.lg); emit(g,body); assert g.lg==t.lg
        g(f'v_mov_b32 v42, v112\nv_mov_b32 v43, v113\nv_mov_b32 v112, v114\nv_mov_b32 v113, v115\nv_mov_b32 v{CH}, v{CH+1}\nv_mov_b32 v{CH+1}, v{CH+2}')
        g('s_add_u32 s15, s15, 1\ns_cmp_lt_u32 s15, 3\ns_cbranch_scc1 KL'); main=[]
    else:
      for ch in range(3):
        H,T,M2=s.kgen_chunk(ch)
        if M: H=merge(H,M,4,4+8*o.mgap)
        main+=H+T; M=M2
    main+=[it for m in M for it in m]
    if o.nokgen: main=[I('s_nop 0')]*20
    n0=len(main)*o.kpre//100; rest=main[n0:]; extra={}
    for k in range(o.kiv): extra[k]=rest[len(rest)*k//o.kiv:len(rest)*(k+1)//o.kiv]
    emit(g,main[:n0]); s.dstamp(4,4); g('s_barrier'); s.stamp(1); s.dstamp(4,5)
    assert o.utv>=o.kiv or not rest
    def post(iv):
        if iv==(o.kiv-1 if rest else 0): emit(g,s.kgen_expand())
    def pre(iv):
        if iv!=8: return
        g(f's_mul_i32 s{sT0}, s{sD}, {ROWS}\nv_lshlrev_b32 v9, 4, v0')
        for c in range(4):
            g(f's_add_u32 m0, s{sUB}, {32+4160*c}\ns_add_u32 s{sT1}, s{sT0}, {WS_UT-6+2*c}')
            for q in range(4): g.vmem(f'buffer_load_dwordx4 v9, s[{rWS}:{rWS+3}], s{sT1} offen offset:{1024*q} sc1 lds','u')
    s.xloop('K',pre,post,extra)
    s.stamp(2)
    s.conv()
    g.lab('LOADONLY'); g.reset(); s.loader_setup(); g('s_barrier'); s.xloop('L'); g('s_endpgm')
    g.lab('X3PATH'); g.reset(); s.x3path()
def conv(s):
    g=s.g; o=s.o; VU,VK,VS=2,3,4; CA=32; UF=[64,128]; KF=[96,160]
    g(f'v_and_b32 v5, 3, v0\nv_mul_u32_u24 v5, 4160, v5\nv_bfe_u32 v6, v0, 2, 2\nv_lshl_add_u32 v5, v6, 3, v5\nv_lshrrev_b32 v7, 4, v0\nv_lshl_add_u32 v5, v7, 4, v5')
    g(f's_add_u32 s9, s{sUB}, 8\nv_add_u32 v{VU}, s9, v5\nv_and_b32 v8, 15, v0\nv_lshlrev_b32 v5, 5, v8\nv_lshlrev_b32 v6, 4, v7\nv_sub_u32 v6, v6, v5')
    g(f's_add_u32 s10, s{sKS}, 480\nv_add_u32 v{VK}, s10, v6')
    g(f'v_bfe_u32 v6, v0, 4, 1\nv_lshl_add_u32 v5, v6, 9, v5\nv_lshrrev_b32 v6, 5, v0\nv_lshl_add_u32 v{VS}, v6, 4, v5')
    g(f'v_mul_u32_u24 v5, 4160, v7\nv_lshl_add_u32 v5, v8, 1, v5\nv_add_u32 v5, s9, v5\nv_add_u32 v6, v7, v8\nv_cmp_gt_u32 vcc, 15, v6')
    for r in range(32): g(f'v_mov_b32 v{CA+r}, 0')
    g(f's_add_u32 s{sT0}, s{sT0}, {WS_YT}\ns_mov_b32 s15, 0')
    g('s_barrier'); s.stamp(3)
    if o.prio: g(f's_setprio {o.prio3}')
    g.wait_vm('u'); s.stamp(4)
    g(f's_mov_b64 exec, vcc\nds_write_b16 v5, v{CA}\ns_mov_b64 exec, -1')
    def reads(b,off):
        R=[]
        for p in range(8):
            R.append(f'ds_read_b128 {v(KF[b]+4*p,4)}, v{VK} offset:{3584-512*p+off}')
            R+=[f'ds_read_b64 {v(UF[b]+4*p+2*h,2)}, v{VU} offset:{512*p+8*h+off}' for h in range(2)]
        return R
    rem={q:[(p,q-p) for p in range(q+1)] for q in range(8)}; order=[]; last=[]
    while any(rem.values()):
        c=[q for q in rem if rem[q] and q not in last[-3:]] or [q for q in rem if rem[q] and q not in last[-2:]] or [q for q in rem if rem[q]]
        q=max(c,key=lambda q:len(rem[q])); order.append((q,)+rem[q].pop(0)); last.append(q)
    for t in reads(0,0): g(t)
    g.lab('CV')
    for b in range(2):
        R=reads(1-b,64 if b==0 else 0); g('s_waitcnt lgkmcnt(0)')
        for k,(q,p,m) in enumerate(order):
            g(f'v_mfma_f32_16x16x32_bf16 {v(CA+4*q,4)}, {v(UF[b]+4*p,4)}, {v(KF[b]+4*m,4)}, {v(CA+4*q,4)}')
            if k<24: g(R[k])
            if k==26 and b==0: g(f'v_add_u32 v{VU}, 128, v{VU}\nv_add_u32 v{VK}, 128, v{VK}')
            if k==34 and b==1: g('s_add_u32 s15, s15, 1\ns_cmp_lt_u32 s15, 4')
    g('s_cbranch_scc1 CV'); s.stamp(5)
    g(f's_lshr_b32 s9, s{sD}, 4\ns_lshl_b32 s9, s9, 7\ns_and_b32 s10, s{sD}, 15\ns_lshl_b32 s10, s10, 2\ns_add_u32 s9, s9, s10\ns_add_u32 s9, s9, {FL_Y}\nv_mov_b32 v5, s9\nv_mov_b32 v6, 1')
    for q in range(8):
        for h in range(2): g(f'v_cvt_pk_bf16_f32 v{10+2*q+h}, v{CA+4*q+2*h}, v{CA+4*q+2*h+1}')
    for q in range(0,8,2):
        x=10+2*q; g(f'v_permlane16_swap_b32 v{x}, v{x+2}\nv_permlane16_swap_b32 v{x+1}, v{x+3}')
        g(f'buffer_store_dwordx4 {v(x,4)}, v{VS}, s[{rWS}:{rWS+3}], s{sT0} offen offset:{512*q} sc1')
    g(f's_waitcnt vmcnt(0)\ns_mov_b64 exec, 1\nbuffer_store_dword v6, v5, s[{rWS}:{rWS+3}], 0 offen sc1')
    s.stamp(6); s.dump_stamps(); g('s_endpgm')
def x3path(s):
    g=s.g; o=s.o; M=f's[{sKS}:{sKS+1}]'
    g(f's_mov_b32 s80, {L_TMP}'); s.loader_setup()
    srd(g,rGW,pGW,1280); g(f'v_lshlrev_b32 v9, 4, v0\ns_mov_b32 m0, {L_GW}')
    for k in range(4): g(f'v_mov_b32 v{28+k}, 0')
    for q in range(2): g.vmem(f'buffer_load_dwordx4 v9, s[{rGW}:{rGW+3}], 0 offen offset:{1024*q} lds','gw')
    g(f's_cmp_eq_u32 s{sWG}, 0\ns_cbranch_scc0 NOINIT')
    for k in range(9):
        if k%4==0: g(f's_mov_b32 s9, {WS_FL+1024*k}')
        g(f'buffer_store_dwordx4 v[28:31], v9, s[{rWS}:{rWS+3}], s9 offen offset:{1024*(k%4)} sc1')
    g(f's_waitcnt vmcnt(0)\nv_mov_b32 v11, 1\ns_mov_b64 exec, 1\nglobal_store_dword v31, v11, s[{pDBG}:{pDBG+1}] sc1\ns_mov_b64 exec, -1')
    g.lab('NOINIT')
    g(f'v_mov_b32 v10, {L_SY}\nds_write_b64 v10, v[30:31]')
    g(f's_and_b32 s9, s{sJ}, 1\ns_lshl_b32 s9, s9, 2\nv_lshrrev_b32 v20, 4, v0\nv_add_u32 v21, s9, v20\nv_and_b32 v22, 7, v0\nv_xor_b32 v21, v21, v22')
    g(f'v_lshrrev_b32 v18, 3, v0\ns_lshl_b32 s9, s{sJ}, 10\nv_lshlrev_b32 v23, 7, v18\nv_lshl_add_u32 v23, v21, 4, v23\nv_add_u32 v10, s9, v23\nv_add_u32 v11, {2*STAGE}, v10')
    g(f'v_lshlrev_b32 v12, 4, v22\nv_add_u32 v12, {L_GW}, v12\nv_subrev_u32 v13, s79, v12\nv_add_u32 v12, s79, v12')
    s.dstamp(4,3); g('s_waitcnt lgkmcnt(0)'); g.wait_vm('gw'); s.dstamp(4,4); g('s_barrier'); s.stamp(1); s.dstamp(4,5)
    def gate(st): g(f'ds_read_b128 v[20:23], v{11 if SLOT(st)==2*STAGE else 10} offset:{SLOT(st)%(2*STAGE)}\nds_read_b128 v[24:27], v{12+(st&1)} offset:{128*st}')
    def dots():
        g.wait_lg()
        for k in range(4):
            g(f'v_lshlrev_b32 v28, 16, v{20+k}\nv_lshlrev_b32 v29, 16, v{24+k}\nv_and_b32 v{20+k}, 0xffff0000, v{20+k}\nv_and_b32 v{24+k}, 0xffff0000, v{24+k}')
            g(f'v_fmac_f32 v30, v28, v29\nv_fmac_f32 v30, v{20+k}, v{24+k}')
    def pre(iv):
        gate(iv)
        if iv==o.utv+1: g.vmem(f'global_load_dword v32, v31, s[{pDBG}:{pDBG+1}] sc1','go')
        if iv==o.utv+3:
            g.wait_vm('go'); g('v_readfirstlane_b32 s9, v32\ns_nop 0\ns_cmp_eq_u32 s9, 1\ns_cbranch_scc1 GOOK')
            s.spin(f'global_load_dword v32, v31, s[{pDBG}:{pDBG+1}] sc1','v_cmp_eq_u32 vcc, 1, v32','-1'); g.lab('GOOK')
            g(f's_cmp_lt_u32 s{sJ}, 10\ns_cbranch_scc0 NOT3\ns_lshl_b32 s9, s{sJ}, 7\ns_lshl_b32 s10, s{sI}, 2\ns_add_u32 s9, s9, s10\ns_add_u32 s9, s9, {FL_UT}')
            g(f'v_mov_b32 v33, s9\ns_mov_b64 exec, 1\nbuffer_store_dword v32, v33, s[{rWS}:{rWS+3}], 0 offen sc1\ns_mov_b64 exec, -1'); g.lab('NOT3')
    def post(iv):
        if iv==6:
            g(f's_lshr_b32 s10, s{sWG}, 1\ns_mul_i32 s10, s10, 5\ns_and_b32 s9, s{sWG}, 1\ns_mul_i32 s11, s9, 3\ns_add_u32 s10, s10, s11\ns_add_u32 s11, s10, 2\ns_sub_u32 s11, s11, s9')
            g(f's_lshr_b32 s10, s10, 6\ns_lshr_b32 s11, s11, 6\ns_sub_u32 s11, s11, s10\ns_lshl_b32 s11, s11, 7\ns_lshl_b32 s10, s10, 7\ns_add_u32 s10, s10, {FL_UT}')
            g(f'v_bfe_u32 v33, v0, 4, 1\nv_mul_u32_u24 v33, s11, v33\nv_and_b32 v34, 15, v0\nv_lshl_add_u32 v33, v34, 2, v33\nv_add_u32 v33, s10, v33')
            g.vmem(f'buffer_load_dword v32, v33, s[{rWS}:{rWS+3}], 0 offen sc1','uf')
        if o.warm and 0<=iv-o.warm<8//o.wn: s.warm(iv-o.warm)
        if iv<100: dots()
        if iv==107:
            g.wait_vm('uf'); g('v_cmp_eq_u32 vcc, 1, v32\ns_nop 0\ns_cmp_eq_u64 vcc, -1\ns_cbranch_scc1 UFOK')
            s.spin(f'buffer_load_dword v32, v33, s[{rWS}:{rWS+3}], 0 offen sc1','v_cmp_eq_u32 vcc, 1, v32','-1'); g.lab('UFOK')
    s.xloop('3',pre,post)
    s.stamp(2); gate(9); dots(); g('s_barrier')
    for c in['quad_perm:[1,0,3,2]','quad_perm:[2,3,0,1]','row_half_mirror']: g(f's_nop 2\nv_add_f32_dpp v30, v30, v30 {c} row_mask:0xf bank_mask:0xf')
    g(f'v_mul_f32 v30, {hex(fb(-1.4426950408889634))}, v30\nv_exp_f32 v30, v30\ns_lshl_b32 s9, s{sI}, 9\nv_add_f32 v30, 1.0, v30\nv_rcp_f32 v30, v30')
    g(f's_lshl_b32 s10, s{sJ}, 5\ns_add_u32 s9, s9, s10\ns_add_u32 s9, s9, {WS_G}\nv_lshlrev_b32 v18, 2, v18\ns_mov_b32 exec_lo, 0x01010101\ns_mov_b32 exec_hi, 0x01010101')
    g(f'buffer_store_dword v30, v18, s[{rWS}:{rWS+3}], s9 offen sc1\ns_waitcnt vmcnt(0)'); s.arrive_h(20,21); s.stamp(3)
    g(f's_lshr_b32 s9, s{sTI}, 1\ns_lshl_b32 s9, s9, 7\ns_add_u32 s9, s9, {FL_H}\nv_lshl_add_u32 v33, v0, 2, s9\nv_mov_b32 v34, {L_SY+4}\ns_mov_b64 {M}, 0xffff\ns_mov_b64 exec, {M}')
    s.spin(f'buffer_load_dword v32, v33, s[{rWS}:{rWS+3}], 0 offen sc1','v_cmp_eq_u32 vcc, 1, v32\ns_nop 1\nv_mov_b32 v35, vcc_lo\nds_write_b32 v34, v35',M)
    g(f'v_mov_b32 v35, -1\nds_write_b32 v34, v35\ns_mov_b64 exec, -1'); s.stamp(4)
    g(f's_lshl_b32 s9, s{sTI}, 8\ns_add_u32 s9, s9, {WS_G}\ns_mov_b32 m0, {L_G}\nv_lshlrev_b32 v20, 2, v0\nbuffer_load_dword v20, s[{rWS}:{rWS+3}], s9 offen sc1 lds')
    g(f's_mul_i32 s9, s{sDJ}, 640\ns_add_u32 s9, s9, {FL_Y}\nv_lshrrev_b32 v20, 3, v0\nv_and_b32 v21, 7, v0\nv_lshlrev_b32 v22, 3, v21\nv_lshl_add_u32 v22, v20, 7, v22\nv_add_u32 v33, s9, v22')
    g(f'v_mul_u32_u24 v20, {ROWS}, v20\nv_lshl_add_u32 v20, v21, 4, v20\ns_mul_i32 s9, s{sDJ}, {80*ROWS}\ns_lshl_b32 s10, s{sTI}, 7\ns_add_u32 s9, s9, s10')
    g(f's_mov_b32 s{sKS}, -1\ns_mov_b32 s{sKS+1}, 0xff\ns_mov_b64 exec, {M}')
    s.spin(f'buffer_load_dwordx2 v[36:37], v33, s[{rWS}:{rWS+3}], 0 offen sc1','v_and_b32 v36, v36, v37\nv_cmp_eq_u32 vcc, 1, v36',M)
    g('s_mov_b64 exec, -1'); s.stamp(5)
    for q in range(10):
        g(f's_mov_b32 m0, {L_KS+4608+(q>>2)*8704+(q&3)*1024}\ns_add_u32 s10, s9, {WS_YT+8*q*ROWS}\nbuffer_load_dwordx4 v20, s[{rWS}:{rWS+3}], s10 offen sc1 lds')
    g('s_waitcnt vmcnt(0)'); s.stamp(6); g('s_barrier'); s.dump_stamps((7,[(k,8+k) for k in range(1,7)])); g('s_endpgm')
def warm(s,k):
    g=s.g
    if k==0:
        srd(g,rWD,pWD,1966080); g(f's_lshr_b32 s9, s{sWG}, 3\ns_mul_i32 s9, s9, 61440\nv_lshl_add_u32 v38, v0, 7, s9')
    for q in range(s.o.wn): g.vmem(f'buffer_load_dword v{40+q}, v38, s[{rWD}:{rWD+3}], 0 offen','wm'); g('v_add_u32 v38, 8192, v38')
```

```python
import sys, os
sys.path.insert(0, os.path.dirname(os.path.abspath(__file__)))
from asmlib import G, v, s_, check
from consts import *
class Gen:
    def __init__(s,o):
        s.o=o; s.g=G(); s.nst=0; s.uid=0
    def L(s,p): s.uid+=1; return f'{p}_{s.uid}'
    def dstamp(s,nm,iv):
        if s.o.diag==nm and 0<=iv-s.o.d0<7: s.stamp(1+iv-s.o.d0,True)
    def stamp(s,k,d=False):
        if s.o.diag and k and not d: return
        if s.o.stamps: s.g(f's_memrealtime s[{84+2*k}:{85+2*k}]' if not s.o.clk else f's_memtime s[{84+2*k}:{85+2*k}] ; memrealtime')
    def dump_stamps(s,who=None):
        if not s.o.stamps: return
        g=s.g
        g('s_waitcnt lgkmcnt(0)\ns_mov_b64 exec, 1')
        if s.o.stamps==2:
            if who is None: return
            l=s.L('DS'); g(f's_cmp_eq_u32 s{sWAVE}, {who[0]}\ns_cbranch_scc0 {l}\ns_not_b32 s84, s84\nv_mov_b32 v1, 0')
            for k,slot in who[1]: g(f'v_mov_b32 v2, s{84+2*k}\nglobal_atomic_umax v1, v2, s[{pDBG}:{pDBG+1}] offset:{4*slot}')
            g.lab(l); return
        g(f's_lshl_b32 s9, s{sWG}, 3\ns_add_u32 s9, s9, s{sWAVE}\ns_lshl_b32 s9, s9, 5\ns_add_u32 s9, s9, {WS_ST}\nv_mov_b32 v1, s9')
        for k in range(8): g(f'v_mov_b32 v{4+k}, s{84+2*k}')
        g(f'buffer_store_dwordx4 v[4:7], v1, s[{rWS}:{rWS+3}], 0 offen\nbuffer_store_dwordx4 v[8:11], v1, s[{rWS}:{rWS+3}], 0 offen offset:16')
    def prologue(s):
        g=s.g; o=s.o
        g(f's_cmp_ge_u32 s{sWG}, 256\ns_cbranch_scc1 END')
        g('s_load_dwordx16 s[16:31], s[0:1], 0\ns_load_dwordx16 s[32:47], s[0:1], 64\ns_load_dwordx2 s[48:49], s[0:1], 128')
        if o.cwarm:
            g('s_getpc_b64 s[50:51]'); g.lab('PC0')
            g('v_lshlrev_b32 v1, 6, v0\nv_min_u32 v1, END-PC0, v1\nglobal_load_dword v255, v1, s[50:51]')
        if o.stamps:
            for k in range(1,8): g(f's_mov_b32 s{84+2*k}, 0')
        s.stamp(0)
        g('v_lshrrev_b32 v1, 6, v0\nv_and_b32 v0, 63, v0')
        g(f'v_readfirstlane_b32 s{sWAVE}, v1')
        g(f's_and_b32 s9, s{sWG}, 7\ns_lshr_b32 s10, s{sWG}, 3')
        g(f's_lshr_b32 s11, s9, 2\ns_lshl_b32 s11, s11, 3\ns_and_b32 s12, s10, 7\ns_add_u32 s{sI}, s11, s12')
        g(f's_and_b32 s11, s9, 3\ns_lshl_b32 s11, s11, 2\ns_lshr_b32 s12, s10, 3\ns_add_u32 s{sJ}, s11, s12')
        if o.g2map==0:
            g(f's_lshl_b32 s11, s9, 2\ns_and_b32 s12, s10, 3\ns_add_u32 s{sTI}, s11, s12\ns_lshr_b32 s{sDJ}, s10, 2')
        else:
            g(f's_lshr_b32 s11, s9, 1\ns_lshl_b32 s11, s11, 3\ns_and_b32 s12, s10, 7\ns_add_u32 s{sTI}, s11, s12')
            g(f's_and_b32 s11, s9, 1\ns_lshl_b32 s11, s11, 2\ns_lshr_b32 s12, s10, 3\ns_add_u32 s{sDJ}, s11, s12')
        g(f's_cmp_lt_u32 s{sWAVE}, 4\ns_cbranch_scc1 CPATH')
    VX,VW=2,6
    def xoffs(s,VX,t=10):
        g=s.g
        g(f's_mul_i32 s9, s{sI}, {128*1280}')
        g(f'v_lshrrev_b32 v{t}, 3, v0\nv_mul_u32_u24 v{t}, 1280, v{t}\nv_add_u32 v{t}, s9, v{t}')
        g(f'v_and_b32 v{t+1}, 7, v0\nv_lshrrev_b32 v{t+2}, 4, v0\nv_xor_b32 v{t+1}, v{t+1}, v{t+2}')
        g(f'v_lshl_add_u32 v{VX}, v{t+1}, 4, v{t}')
        g(f'v_xor_b32 v{t+1}, 4, v{t+1}'); g(f'v_lshl_add_u32 v{VX+1}, v{t+1}, 4, v{t}\nv_add_u32 v{VX+1}, {8*1280-1024}, v{VX+1}')
        g(f'v_add_u32 v{VX+2}, {16*1280-2048}, v{VX}\nv_add_u32 v{VX+3}, {16*1280-2048}, v{VX+1}')
    def loader_setup(s):
        g=s.g; VX,VW=s.VX,s.VW
        g(f's_and_b32 s14, s{sWAVE}, 3')
        g(f's_lshl_b32 s12, s14, 12\ns_mul_i32 s13, s14, 3072\ns_mul_i32 s{sKB0}, s14, 40960'); g(f's_add_u32 s13, s13, {WOFF}')
        s.xoffs(VX)
        g(f's_and_b32 s9, s{sI}, {s.o.swp}\ns_mul_i32 s78, s9, 196608\ns_lshl_b32 s79, s9, 7\ns_add_u32 s76, s{sKB0}, s79\ns_sub_u32 s77, s{sKB0}, s79')
        g(f's_mul_i32 s9, s14, {16*3072}\ns_mul_i32 s10, s{sJ}, 192\ns_add_u32 s9, s9, s10')
        for q in range(3):
            g(f'v_add_u32 v10, {64*q}, v0\nv_mul_u32_u24 v11, 171, v10\nv_lshrrev_b32 v11, 11, v11')
            if s.o.m16: g('v_bfe_u32 v12, v11, 3, 1\nv_mul_u32_u24 v13, 12, v11\nv_sub_u32 v13, v10, v13\nv_lshlrev_b32 v12, 1, v12\nv_xor_b32 v12, v12, v13\nv_sub_u32 v12, v12, v13\nv_add_u32 v12, v12, v0')
            g(f'v_mul_u32_u24 v11, {3072-192}, v11\nv_lshl_add_u32 v11, v{12 if s.o.m16 else 0}, 4, v11\nv_add_u32 v{VW+q}, s9, v11')
        s.dstamp(4,0); g('s_waitcnt lgkmcnt(0)'); s.dstamp(4,1)
        srd(g,rX,pU,2621440); srd(g,rWG,pWG,1966080); srd(g,rWU,pWU,1966080); srd(g,rWS,pWS,WS_END)
    def stage(s,st,x3=False):
        VX,VW=s.VX,s.VW; b=SLOT(st); t=('st',st)
        G_=[]; ad='sub' if st&1 else 'add'
        if s.o.nodma and st>=3: return G_
        x=lambda q:('vm',f'buffer_load_dwordx4 v{VX+q}, s[{rX}:{rX+3}], s{sXO} offen offset:{1024*q} lds',t)
        w=lambda r,q:('vm',f'buffer_load_dwordx4 v{VW+q}, s[{r}:{r+3}], s{sWO} offen offset:{1024*q} lds',t)
        if st<s.o.heavy:
            G_+=[[('i',f's_add_u32 m0, s12, {b}\ns_add_u32 s{sXO}, s{76+(st&1)}, {128*st}'),x(0)],[x(1)],[x(2)],[x(3)]]
        elif x3:
            for qq in range(4): G_+=[[('i',f's_mov_b32 m0, {b+4096*qq}\ns_{ad}_u32 s{sXO}, {128*st+40960*qq}, s79'),x(0)],[x(1)],[x(2)],[x(3)]]
        G_+=[[('i',f's_add_u32 m0, s13, {b}\ns_{ad}_u32 s{sWO}, {196608*st}, s78'),w(rWG,0)],[w(rWG,1)],[w(rWG,2)]]
        G_+=[[('i',f's_add_u32 m0, s13, {b+UPOFF}\ns_nop 0'),w(rWU,0)],[w(rWU,1)],[w(rWU,2)]]
        return G_
    def flat(s,G_): return [it for grp in G_ for it in grp]
    def spin(s,load,cmp_,mask):
        g=s.g; a=s.L('SP'); b=s.L('SX')
        g('s_mov_b32 s15, 0'); g.lab(a); g(load); g('s_waitcnt vmcnt(0)'); g(cmp_)
        g(f's_add_u32 s15, s15, 1\ns_cmp_gt_u32 s15, {SPIN}\ns_cbranch_scc1 {b}\ns_cmp_eq_u64 vcc, {mask}\ns_cbranch_scc0 {a}'); g.lab(b)
    def arrive_h(s,va,vb):
        g=s.g; l=s.L('HA')
        g(f's_mov_b64 exec, 1\nv_mov_b32 v{va}, {L_SY}\nv_mov_b32 v{vb}, 1\nds_add_rtn_u32 v{va}, v{va}, v{vb}\ns_waitcnt lgkmcnt(0)')
        g(f'v_readfirstlane_b32 s9, v{va}\ns_lshl_b32 s10, s{sI}, 7\ns_lshl_b32 s11, s{sJ}, 2\ns_cmp_eq_u32 s9, 4\ns_cbranch_scc0 {l}')
        g(f's_add_u32 s10, s10, s11\ns_add_u32 s10, s10, {FL_H}\nv_mov_b32 v{va}, s10')
        g(f'buffer_store_dword v{vb}, v{va}, s[{rWS}:{rWS+3}], 0 offen sc1'); g.lab(l); g('s_mov_b64 exec, -1')
    from gen_x import xloop, xpaths, kgen_chunk, kgen_expand, conv, x3path, cmul, warm
    from gen_c import cpath, gemm1, gemm2, final
    def build(s):
        g=s.g
        s.prologue(); s.xpaths(); s.cpath()
        g.lab('END'); g('s_endpgm')
        bad=check(g.L)
        for b in bad: print('HAZARD',b,file=sys.stderr)
        ref=open(os.path.join(os.path.dirname(os.path.abspath(__file__)),'..','cdna_kernels',NAME+'.s.ref')).read()
        hdr=ref[:ref.index('; Override launch')]
        hdr+='; generated by gen/gen.py: one persistent launch, 256 workgroups x 8 waves (4 GEMM waves + 4 loader/SSM waves)\n'
        hdr+='; @launch grid=(256,1,1) block=(512,1,1) lds=163840\n'
        hdr+=f'.amdgcn_target "amdgcn-amd-amdhsa--gfx950"\n.text\n.globl {NAME}_kernel\n.p2align 8\n.type {NAME}_kernel,@function\n{NAME}_kernel:\n'
        ftr=ref[ref.index('.section .rodata'):]
        return hdr+g.text()+ftr, len(bad)
def make(**kw):
    o=Opt(); o.stamps=False; o.rot=1; o.g2map=0; o.pk=0; o.prio=1; o.prio2=1; o.prio3=3; o.mgap=8; o.w0=12; o.w8=12; o.w9=8; o.dfrac=75; o.warm=0; o.heavy=10; o.n1=1; o.na=5; o.swp=1; o.kloop=0; o.ilv=1; o.ub=4; o.wn=2; o.kpre=100; o.kiv=2; o.utv=2; o.twd=1; o.m16=0; o.touch=1; o.pre=2; o.mprio=0; o.ual=0; o.prioc=0; o.priox=1; o.diag=0; o.d0=0; o.cwarm=1; o.nokgen=0; o.nodma=0; o.clk=0
    for k,x in kw.items(): setattr(o,k,x)
    return Gen(o).build()
if __name__=='__main__':
    kw={}
    out=sys.argv[1]
    for a in sys.argv[2:]:
        k,x=a.split('='); kw[k]=int(x)
    t,nb=make(**kw)
    open(out,'w').write(t)
    print('wrote',out,len(t.split('\n')),'lines, hazards:',nb)
```

```python
from consts import *
ACC=16; FR=[112,132]; VXA=2; VWA=6; VH=7
def cpath(s):
    g=s.g; o=s.o; g.reset(); g.lab('CPATH')
    if o.prioc: g(f's_setprio {o.prioc}')
    s.loader_setup(0)
    emit(g,s.flat(s.stage(0))); s.dstamp(4,2)
    srd(g,rWD,pWD,1966080); vm0=list(g.vm)
    g(f's_cmp_lt_u32 s{sJ}, 10\ns_cbranch_scc1 CXP')
    PD,PA,PF=200,206,224
    g(f's_lshl_b32 s11, s78, 2\ns_add_u32 s11, s11, s14\ns_mul_i32 s9, s11, 40960\ns_mul_i32 s10, s77, 160\ns_add_u32 s9, s9, s10\nv_lshlrev_b32 v1, 4, v0')
    for q in range(5):
        g(f'v_add_u32 v9, {64*q}, v0\nv_mul_u32_u24 v9, 6554, v9\nv_lshrrev_b32 v9, 16, v9\nv_mul_u32_u24 v9, 1120, v9\nv_add_u32 v{PD+q}, v9, v1')
    g(f's_add_u32 m0, s12, {SLOT(2)}\nv_add_u32 v{PD+4}, 4096, v{PD+4}')
    for q in range(5):
        if q==4: g(f's_add_u32 m0, s13, {SLOT(2)}\ns_nop 0')
        g.vmem(f'buffer_load_dwordx4 v{PD+q}, s[{rWD}:{rWD+3}], s9 offen offset:{1024*(q&3)} lds','blk')
    emit(g,s.flat(s.stage(1)))
    g('v_bfe_u32 v10, v0, 2, 2\nv_bfe_u32 v9, v0, 4, 1\nv_lshl_add_u32 v10, v9, 2, v10\nv_lshrrev_b32 v9, 5, v0\nv_lshl_add_u32 v10, v9, 4, v10')
    g(f'v_mul_u32_u24 v10, 160, v10\nv_and_b32 v9, 3, v0\nv_mul_u32_u24 v9, 40, v9\nv_add_u32 v10, v10, v9\nv_add_u32 v{PA}, s12, v10\ns_sub_u32 s9, s13, 4096\ns_sub_u32 s9, s9, s12')
    for n in range(5): g(f'v_add_u32 v9, {1280+8*n}, v10\nv_lshrrev_b32 v11, 12, v9\nv_mad_u32_u24 v9, v11, s9, v9\nv_add_u32 v{PA+1+n}, s12, v9')
    g(f's_mul_i32 s9, s77, 48\ns_add_u32 s9, s9, s11\ns_mul_i32 s9, s9, 5120\ns_add_u32 s11, s9, {WS_WP}\nv_add_u32 v9, 4096, v1')
    g.wait_vm('blk')
    for n in range(5):
        g.lds(f'ds_read_b64_tr_b16 {v(PF+4*n,2)}, v{PA} offset:{SLOT(2)+8*n}'); g.lds(f'ds_read_b64_tr_b16 {v(PF+4*n+2,2)}, v{PA+1+n} offset:{SLOT(2)}')
    g.wait_lg(); emit(g,s.flat(s.stage(2)))
    for n in range(5): g.vmem(f'buffer_store_dwordx4 {v(PF+4*n,4)}, v{9 if n==4 else 1}, s[{rWS}:{rWS+3}], s11 offen offset:{1024*(n&3)} sc1')
    g('s_branch CJN'); g.lab('CXP'); g.vm=vm0
    for st in(1,2): emit(g,s.flat(s.stage(st))); s.dstamp(4,2+st)
    s.xpose(0); g.wait_vm(('st',0)); s.dstamp(4,5); s.xpose(1)
    g.lab('CJN')
    g(f's_lshr_b32 s12, s{sWAVE}, 1\ns_and_b32 s13, s{sWAVE}, 1')
    g('v_and_b32 v10, 31, v0\nv_lshlrev_b32 v10, 7, v10\ns_lshl_b32 s9, s12, 13\nv_add_u32 v10, s9, v10')
    g('v_bfe_u32 v11, v0, 1, 3\nv_lshrrev_b32 v12, 5, v0\nv_xor_b32 v11, v11, v12')
    g(f'v_lshl_add_u32 v{VXA}, v11, 4, v10')
    for ks in(1,2,3): g(f'v_xor_b32 v{VXA+ks}, {32*ks}, v{VXA}')
    for ks in range(4): g(f'v_add_u32 v{VXA+ks}, {SLOT(0)}, v{VXA+ks}')
    g(f'v_bfe_u32 v10, v0, 4, 1\nv_mul_u32_u24 v13, {UPOFF}, v10\nv_bfe_u32 v11, v0, 2, 2\nv_lshl_add_u32 v11, v12, 3, v11')
    g(f'v_mul_u32_u24 v11, 192, v11\nv_add_u32 v13, v13, v11\nv_and_b32 v11, 3, v0\nv_lshl_add_u32 v13, v11, 3, v13')
    g(f's_mul_i32 s9, s13, 96\ns_add_u32 s9, s9, {WOFF+SLOT(0)}\nv_add_u32 v{VWA}, s9, v13')
    g(f'v_and_b32 v11, 15, v0\nv_lshlrev_b32 v11, 4, v11\nv_lshl_add_u32 v11, v12, 8, v11\nv_lshl_add_u32 v{VH}, v10, 10, v11')
    srd(g,rOUT,pOUT,2621440)
    g(f's_lshr_b32 s9, s{sWG}, 3\ns_lshr_b32 s10, s9, 3\ns_lshl_b32 s10, s10, 2\ns_add_u32 s10, s10, s{sWAVE}\ns_lshl_b32 s11, s{sI}, 4\ns_add_u32 s10, s10, s11\ns_mul_i32 s10, s10, {8*1280}')
    g(f's_and_b32 s11, s{sJ}, 12\ns_add_u32 s11, s11, 6\nv_lshrrev_b32 v10, 3, v0\nv_and_b32 v11, 3, v0\nv_mul_u32_u24 v12, 1280, v10\nv_add_u32 v13, s11, v11')
    g('v_subrev_u32 v14, 10, v13\nv_min_u32 v13, v13, v14\nv_subrev_u32 v14, 10, v13\nv_min_u32 v13, v13, v14\nv_lshl_add_u32 v12, v13, 7, v12\nv_add_u32 v250, s10, v12')
    if not o.jmap:
        g(f's_lshl_b32 s9, s9, 1\ns_add_u32 s9, s9, s12\ns_mul_i32 s9, s9, {10*3072}\ns_lshr_b32 s10, s{sJ}, 2\ns_mul_i32 s10, s10, 768\ns_add_u32 s9, s9, s10')
        g('v_min_u32 v11, 59, v0\nv_mul_u32_u24 v10, 43, v11\nv_lshrrev_b32 v10, 8, v10\nv_mul_u32_u24 v12, 3072-768, v10\nv_lshl_add_u32 v12, v11, 7, v12\nv_add_u32 v251, s9, v12')
    else:
        g(f's_and_b32 s9, s9, 7\ns_lshl_b32 s9, s9, 1\ns_add_u32 s9, s9, s12\ns_mul_i32 s9, s9, 28\ns_lshl_b32 s10, s76, 6\ns_add_u32 s9, s9, s10\ns_add_u32 s9, s9, 192\ns_mul_i32 s10, s{sJ}, 192')
        g('v_min_u32 v11, 55, v0\nv_lshrrev_b32 v10, 1, v11\nv_add_u32 v10, s9, v10\nv_subrev_u32 v12, 640, v10\nv_min_u32 v10, v10, v12\nv_mul_u32_u24 v10, 3072, v10')
        g('v_and_b32 v11, 1, v11\nv_lshl_add_u32 v10, v11, 7, v10\nv_add_u32 v251, s10, v10')
    g(f's_cmp_eq_u32 s13, 0\ns_cselect_b64 s[50:51], s[{pWG}:{pWG+1}], s[{pWU}:{pWU+1}]')
    g(f's_lshl_b32 s9, s{sWG}, 2\ns_add_u32 s9, s9, s{sWAVE}\ns_mul_i32 s9, s9, 1920\nv_min_u32 v12, 14, v0\nv_lshl_add_u32 v249, v12, 7, s9')
    def touch():
        if o.touch: g.vmem('global_load_dword v252, v251, s[50:51]')
        if o.xt or not o.jmap: g.vmem(f'global_load_dword v253, v250, s[{pU}:{pU+1}]')
        if o.twd==1: g.vmem(f'global_load_dword v254, v249, s[{pWD}:{pWD+1}]')
    touch()
    s.dstamp(4,6)
    for r in range(96): g(f'v_mov_b32 v{ACC+r}, 0')
    s.gemm1(); s.gemm2(); s.final()
def touch(g): g(f'global_load_dword v252, v251, s[50:51]\nglobal_load_dword v253, v250, s[{pU}:{pU+1}]')
def gemm1(s):
    g=s.g; o=s.o
    def reads(ks,F):
        x=lambda tj:(f'ds_read_b128 {v(F+12+4*tj,4)}, v{VXA+ks} offset:{4096*tj}',('x',F,tj))
        w=lambda fi,h:(f'ds_read_b64_tr_b16 {v(F+4*fi+2*h,2)}, v{VWA} offset:{ks*3072+h*768+fi*32}',('w',F,fi))
        return [x(0),w(0,0),w(0,1),x(1),w(1,0),w(1,1),w(2,0),w(2,1)]
    def mf(F,fi,tj):
        g.wait_lg(('w',F,fi)); g.wait_lg(('x',F,tj)); a=ACC+16*(3*tj+fi)
        g(f'v_mfma_f32_32x32x16_bf16 {v(a,16)}, {v(F+4*fi,4)}, {v(F+12+4*tj,4)}, {v(a,16)}')
    g(f's_mov_b32 s80, 0\ns_mov_b32 s81, 1\ns_mov_b32 s83, {-2*STAGE}')
    g('s_barrier'); s.stamp(1)
    for t,tag in reads(0,FR[0]): g.lds(t,tag)
    st0=list(g.lg)
    g.lab('G1')
    g(f's_cmp_eq_u32 s81, 2\ns_cselect_b32 s82, s83, {STAGE}\ns_cselect_b32 s81, -1, s81\ns_add_u32 s81, s81, 1')
    order=[(0,0),(0,1),(1,0),(1,1),(2,0),(2,1)]
    for ks in range(4):
        F=FR[ks&1]; R=reads((ks+1)&3,FR[(ks+1)&1])
        if ks==3:
            g.wait_vm(('st',1)); g('s_cmp_eq_u32 s80, 0\ns_cbranch_scc1 G1W'); g.wait_vm(('st',2))
            if o.utw>1: g(f's_cmp_lt_u32 s80, {o.utw}\ns_cbranch_scc1 G1W')
            g.wait_vm('uts'); g.lab('G1W'); g.wait_lg()
            if o.diag and o.diag<4: g(f's_sub_u32 s9, s80, {o.d0}\ns_lshl_b32 s9, s9, 1\ns_sub_u32 s10, s9, 2\ns_cmp_lt_u32 s10, 14\ns_cselect_b32 m0, s9, 16\ns_nop 0\ns_movreld_b32 s84, s100\n'+('s_memtime' if o.clk else 's_memrealtime')+' s[100:101]')
        for k,(fi,tj) in enumerate(order):
            mf(F,fi,tj)
            if ks==3 and k==0: g('s_barrier')
            if k<4:
                for t,tag in R[2*k:2*k+2]: g.lds(t,tag)
            if k==4:
                if ks==0: g(f'v_add_u32 v{VXA}, s82, v{VXA}\nv_add_u32 v{VXA+1}, s82, v{VXA+1}')
                if ks==1: g(f'v_add_u32 v{VXA+2}, s82, v{VXA+2}')
                if ks==2: g(f'v_add_u32 v{VXA+3}, s82, v{VXA+3}\nv_add_u32 v{VWA}, s82, v{VWA}')
                if ks==3: g('s_add_u32 s80, s80, 1\ns_cmp_lt_u32 s80, 10')
    assert g.lg==st0
    g('s_cbranch_scc1 G1')
    s.stamp(2); s.dstamp(6,0)
    g(f's_lshl_b32 s9, s{sI}, 1\ns_add_u32 s9, s9, s12\ns_mul_i32 s9, s9, 196608')
    g(f's_mul_i32 s10, s{sJ}, 6\ns_mul_i32 s11, s13, 3\ns_add_u32 s10, s10, s11')
    for fi in range(3):
        g(f's_add_u32 s11, s10, {fi}\ns_lshr_b32 s15, s11, 1\ns_lshl_b32 s15, s15, 12\ns_and_b32 s11, s11, 1\ns_lshl_b32 s11, s11, 9\ns_add_u32 s11, s11, s15\ns_add_u32 s{80+fi}, s11, s9')
    for fi,tj in order:
        a=ACC+16*(3*tj+fi)
        for r in range(8): g(f'v_mul_f32 v{a+r}, v{a+r}, v{a+r+8}')
        for r in range(4): g(f'v_cvt_pk_bf16_f32 v{a+r}, v{a+2*r}, v{a+2*r+1}')
        g.vmem(f'buffer_store_dwordx4 {v(a,4)}, v{VH}, s[{rWS}:{rWS+3}], s{80+fi} offen offset:{2048*tj} sc1','hst')
    s.dstamp(6,1); g.wait_lg()
VL=1; VL2=2; VAR=3; VHA=4; A2=8; AF0=88
def gemm2(s):
    g=s.g; o=s.o; NA=o.na; HB=AF0+20*NA; NH=(256-HB)//16; AF=lambda st:AF0+20*(st%NA); HF=lambda st,tau:HB+16*(st%NH)+4*tau
    g(f's_mul_i32 s12, s{sWAVE}, 10240\ns_lshl_b32 s13, s{sDJ}, 2\ns_add_u32 s13, s13, s{sWAVE}\ns_mul_i32 s13, s13, 61440\ns_add_u32 s77, s13, {WS_WP}')
    g(f'v_lshlrev_b32 v{VL}, 4, v0\nv_add_u32 v{VL2}, 4096, v{VL}\nv_add_u32 v{VAR}, s12, v{VL}')
    if o.rt: g(f's_and_b32 s76, s{sTI}, 3\ns_mul_i32 s76, s76, 3')
    else: g(f's_mul_i32 s76, s{sDJ}, {o.r2}\ns_lshr_b32 s76, s76, 1\ns_cmp_ge_u32 s76, 12\ns_cselect_b32 s9, 12, 0\ns_sub_u32 s76, s76, s9')
    g(f's_add_u32 s78, s77, 61440\ns_mul_i32 s9, s76, 5120\ns_add_u32 s13, s77, s9')
    W1='' if o.nsc&1 else ' sc1'; H1='' if o.nsc&2 else ' sc1'
    nxt=('i','s_add_u32 s13, s13, 5120\ns_cmp_eq_u32 s13, s78\ns_cselect_b32 s13, s77, s13')
    def wd(st):
        b=RS((st-NA)&3); t=('wd',st); d=lambda q:('vm',f'buffer_load_dwordx4 v{VL2 if q==4 else VL}, s[{rWS}:{rWS+3}], s13 offen offset:{1024*(q&3)}{W1} lds',t)
        return [[('i',f's_add_u32 m0, s12, {b}\ns_nop 0'),d(0)],[d(1)],[d(2)],[d(3),('i',f's_add_u32 m0, s12, {b+4096}')],[('i','s_nop 0'),d(4),nxt]]
    def wr(st):
        d=lambda q:('vm',f'buffer_load_dwordx4 {v(AF(st)+4*q,4)}, v{VL2 if q==4 else VL}, s[{rWS}:{rWS+3}], s13 offen offset:{1024*(q&3)}{W1}',('wr',st))
        return [[d(0)],[d(1)],[d(2)],[d(3)],[d(4),nxt]]
    def rd(st):
        return [[('lds',f'ds_read_b128 {v(AF(st)+4*n,4)}, v{VAR} offset:{RS((st-NA)&3)+1024*n}',('a',st))] for n in range(5)]
    pf=lambda st:wr(st) if st<NA else wd(st)
    for st in range(o.n1): emit(g,s.flat(pf(st)))
    g(f's_mul_i32 s14, s{sTI}, 196608\ns_mul_i32 s9, s{sWAVE}, 49152\ns_add_u32 s14, s14, s9')
    g(f's_add_u32 s81, s14, 49152\ns_lshl_b32 s9, s76, 12\ns_add_u32 s80, s14, s9')
    for tau in range(4): g(f's_add_u32 s9, s{sWAVE}, {tau}\ns_and_b32 s9, s9, 3\ns_lshl_b32 s9, s9, 10\nv_add_u32 v{VHA+tau}, s9, v{VL}')
    g.wait_vm('hst'); s.arrive_h(8,9); s.stamp(3); s.dstamp(6,2)
    if o.hold:
        g(f'v_mov_b32 v8, {L_SY}\ns_mov_b32 s15, 0'); g.lab('AW'); g('ds_read_b32 v9, v8\ns_waitcnt lgkmcnt(0)\nv_readfirstlane_b32 s9, v9')
        g(f's_add_u32 s15, s15, 1\ns_cmp_gt_u32 s15, {SPIN*8}\ns_cbranch_scc1 AX\ns_cmp_ge_u32 s9, 5\ns_cbranch_scc0 AW'); g.lab('AX')
    for st in range(o.n1,NA+4):
        emit(g,s.flat(pf(st)))
        if st==NA-1: s.dstamp(6,3)
    s.dstamp(5,0); s.dstamp(6,4)
    if o.sp==3:
        g(f'v_mov_b32 v0, {L_SY+4}\ns_mov_b64 exec, 1\nds_inc_u32 v0, v0\ns_mov_b64 exec, -1\ns_lshl_b32 s9, s{sWAVE}, 2\ns_add_u32 s9, s9, {L_SY+16}'); s.lspin(8,9,'s9',1)
    elif o.sp:
        g(f's_lshr_b32 s9, s{sTI}, 1\ns_lshl_b32 s9, s9, 3\ns_add_u32 s9, s9, s{sWAVE}\ns_lshl_b32 s9, s9, 4\ns_add_u32 s9, s9, {FL_H}')
        s.sspin(f's_buffer_load_dwordx4 s[16:19], s[{rWS}:{rWS+3}], s9 glc',range(16,20),1,'s_waitcnt vmcnt(0)\n'*(o.pace>0)+f'ds_read_b32 v9, v{VAR}\ns_waitcnt lgkmcnt(0)\n'*max(o.pace-1,0))
        if o.sp==2: g(f'v_mov_b32 v0, {L_SY+4}\nv_mov_b32 v9, 1\ns_mov_b64 exec, 1\nds_add_u32 v0, v9\ns_mov_b64 exec, -1')
    else:
        g(f's_lshl_b32 s10, s{sWAVE}, 1\ns_add_u32 s10, s10, {L_SY+8}\nv_mov_b32 v8, s10\ns_mov_b32 s15, 0')
        g.lab('HW'); g('ds_read_u16 v9, v8\ns_waitcnt lgkmcnt(0)\nv_readfirstlane_b32 s9, v9')
        g(f's_add_u32 s15, s15, 1\ns_cmp_gt_u32 s15, {SPIN*8}\ns_cbranch_scc1 HX\ns_cmp_eq_u32 s9, 0xffff\ns_cbranch_scc0 HW'); g.lab('HX')
    if o.prio: g(f's_setprio {o.prio2}')
    s.stamp(4); s.dstamp(5,1); s.dstamp(6,5)
    def hl(st,tau):
        return [('vm',f'buffer_load_dwordx4 {v(HF(st,tau),4)}, v{VHA+tau}, s[{rWS}:{rWS+3}], s80 offen{H1}',('h',st,tau))]+([('i','s_add_u32 s80, s80, 4096\ns_cmp_eq_u32 s80, s81\ns_cselect_b32 s80, s14, s80')] if tau==3 else [])
    for st in range(NH):
        for tau in range(4): emit(g,hl(st,tau))
    s.dstamp(5,2)
    for st in range(12):
        main=[]
        for tau in range(4):
            for n in range(5):
                a=A2+20*tau+4*n; c=v(a,4) if st else '0'
                it=[]
                if n==0: it.append(('wvm',('h',st,tau)))
                it.append(('i',f'v_mfma_f32_16x16x32_bf16 {v(a,4)}, {v(AF(st)+4*n,4)}, {v(HF(st,tau),4)}, {c}'))
                if n==4 and st+NH<12: it+=hl(st+NH,tau)
                main.append(it)
        side=[]; k=st-1+NA
        if o.late:
            if st>=1 and k<12:
                if k<NA+4: R=rd(k); R[0]=[('wvm',('wd',k))]+R[0]; side+=R
                else: side+=wr(k)
        else:
            if st>=2 and k+3<12:
                W=wd(k+3); W[0]=[('wlg',('a',k-1))]+W[0]; side+=W
            if st>=1 and k<12:
                R=rd(k); R[0]=[('wvm',('wd',k))]+R[0]; side+=R
        side=[x for grp in side for x in(grp,[])]
        g.wait_lg(('a',st)); g.wait_vm(('wr',st))
        for k,it in enumerate(main):
            emit(g,it)
            if k<len(side): emit(g,side[k])
        if o.sp>=2 and st==o.yst: g('s_mov_b64 exec, 1'); g.lds('ds_inc_u32 v0, v0 offset:4'); g('s_mov_b64 exec, -1')
        if st in(0,3,7): s.dstamp(5,3+(st+1)//4)
    if o.sp>=2: g(f'v_lshrrev_b32 v0, 4, v{VL}')
    s.stamp(5); s.dstamp(5,6); s.dstamp(6,6)
Y=AF0; GG=AF0+10; T_=AF0+12; O_=AF0+20; YA=AF0+32; P_=192
def final(s):
    g=s.g; o=s.o
    g(f'v_add_u32 v128, s12, v{VL}')
    for tau in range(1,4):
        g(f's_sub_u32 s9, s{sWAVE}, {tau}\ns_and_b32 s9, s9, 3\ns_mul_i32 s10, s9, 10240\nv_add_u32 v{1+tau}, s10, v{VL}')
        if tau==3: g('s_nop 0')
        for n in range(5): g.lds(f'ds_write_b128 v128, {v(A2+20*tau+4*n,4)} offset:{RS(tau-1)+n*1024}')
    g(f'v_lshrrev_b32 v129, 4, v0\nv_mul_u32_u24 v129, 20, v129\nv_bfe_u32 v130, v0, 2, 2\nv_add_u32 v130, v129, v130\nv_and_b32 v131, 3, v0')
    g(f's_lshl_b32 s9, s{sWAVE}, 5\ns_add_u32 s10, s9, {L_KS+4608}\nv_lshl_add_u32 v131, v131, 3, s10\nv_lshl_add_u32 v131, v130, 7, v131\ns_movk_i32 s10, 4608')
    for n in range(5): g(f'v_add_u32 v5, {4*n}, v130\nv_lshrrev_b32 v5, 5, v5\nv_mad_u32_u24 v{YA+n}, v5, s10, v131')
    g(f'v_and_b32 v131, 15, v0\ns_lshl_b32 s9, s9, 1\ns_add_u32 s10, s9, {L_G}\nv_lshl_add_u32 v6, v131, 2, s10')
    g(f'v_mul_u32_u24 v131, 1280, v131\nv_lshl_add_u32 v7, v129, 1, v131')
    g(f's_lshl_b32 s9, s{sTI}, 2\ns_add_u32 s9, s9, s{sWAVE}\ns_mul_i32 s9, s9, 20480\ns_mul_i32 s10, s{sDJ}, 160\ns_add_u32 s11, s9, s10')
    g.wait_lg(); g('s_barrier'); s.stamp(6)
    g.lds(f'ds_read_b32 v{GG}, v6','g')
    for n in range(5):
        g.lds(f'ds_read_b64_tr_b16 {v(Y+2*n,2)}, v{YA+n} offset:{512*n}',('y',n))
        for tau in range(1,4): g.lds(f'ds_read_b128 {v(P_+12*n+4*(tau-1),4)}, v{1+tau} offset:{RS(tau-1)+n*1024}',('p',n))
        if n>=2: fin(g,n-2)
    fin(g,3); fin(g,4)
    s.stamp(7); s.dump_stamps((0,[(k,1+k) for k in range(8)])); g('s_endpgm')
def fin(g,n):
    g.wait_lg(('p',n)); a=A2+4*n; O=O_; T=T_; p=P_+12*n
    for e in range(4): g(f'v_add_f32 v{a+e}, v{a+e}, v{p+e}\nv_add_f32 v{p+4+e}, v{p+4+e}, v{p+8+e}')
    for e in range(4):
        g(f'v_lshlrev_b32 v{T+e}, 16, v{Y+2*n+e//2}' if e%2==0 else f'v_and_b32 v{T+e}, 0xffff0000, v{Y+2*n+e//2}')
        g(f'v_add_f32 v{a+e}, v{a+e}, v{p+4+e}')
    for e in range(4): g(f'v_sub_f32 v{T+e}, v{T+e}, v{a+e}')
    for e in range(4): g(f'v_fmac_f32 v{a+e}, v{GG}, v{T+e}')
    g(f'v_cvt_pk_bf16_f32 v{O+2*n}, v{a}, v{a+1}\nv_cvt_pk_bf16_f32 v{O+2*n+1}, v{a+2}, v{a+3}')
    if n in(1,3): g.vmem(f'buffer_store_dwordx4 {v(O+2*n-2,4)}, v7, s[{rOUT}:{rOUT+3}], s11 offen offset:{8*(n-1)}')
    if n==4: g.vmem(f'buffer_store_dwordx2 {v(O+8,2)}, v7, s[{rOUT}:{rOUT+3}], s11 offen offset:32')
```

```python
from consts import *
I=lambda t:('i',t)
SA=10; FA=18; RAW=20; LDT,DSK=32,33; DT,DTL,DTP=34,35,36
B_,C_,ZR,ZI,CC=38,40,42,43,44; E1,E8,E256,E512,E1024=46,50,54,58,62; TM=66; CVT=70; P0=80
BF,AFR,KA=128,160,192
sKS,sUB,sT0,sT1=34,35,50,51
def cmul(s,d,a,b):
    if s.o.pk:
        return [I(f'v_pk_mul_f32 {v(d,2)}, {v(a,2)}, {v(b,2)} op_sel:[0,0] op_sel_hi:[0,1]'),
                I(f'v_pk_fma_f32 {v(d,2)}, {v(a,2)}, {v(b,2)}, {v(d,2)} op_sel:[1,1,0] op_sel_hi:[1,0,1] neg_lo:[0,1,0]')]
    return [I(f'v_mul_f32 v{d}, v{a}, v{b}'),I(f'v_mul_f32 v{d+1}, v{a}, v{b+1}'),
            I(f'v_fma_f32 v{d}, -v{a+1}, v{b+1}, v{d}'),I(f'v_fmac_f32 v{d+1}, v{a+1}, v{b}')]
def Ex(dst,x,TM,ZR):
    L=[]
    if x!=1:
        L+=[I(f'v_mul_f32 v{TM}, {hex(fb(x))}, v{ZR}'),I(f'v_mul_f32 v{TM+1}, {hex(fb(x))}, v{ZR+1}'),I(f'v_fract_f32 v{TM+1}, v{TM+1}')]; m=TM
    else: L+=[I(f'v_fract_f32 v{TM+1}, v{ZR+1}')]; m=ZR
    L+=[I(f'v_exp_f32 v{TM}, v{m}'),I(f'v_cos_f32 v{dst}, v{TM+1}'),I(f'v_sin_f32 v{dst+1}, v{TM+1}'),
        I(f'v_mul_f32 v{dst}, v{dst}, v{TM}'),I(f'v_mul_f32 v{dst+1}, v{dst+1}, v{TM}')]
    return L
def fb(x):
    import struct; return struct.unpack('<I',struct.pack('<f',x))[0]
class Rows:
    def __init__(s,L): s.L=L; s.pend={}
    def put(s,row,r):
        k=row>>2
        if k in s.pend:
            r0,row0=s.pend.pop(k)
            s.L.append(('lds',f'ds_write2_b32 v{SA+k}, v{r0}, v{r} offset0:{68*(row0&3)} offset1:{68*(row&3)}'))
        else: s.pend[k]=(r,row)
    def flush(s):
        for k,(r,row) in s.pend.items(): s.L.append(('lds',f'ds_write_b32 v{SA+k}, v{r} offset:{272*(row&3)}'))
        s.pend={}
CH=50; HH=54; ONE=65; KSC=37; EA,EB=68,70; RW=80
def unp(dst,a,ch): return I([f'v_lshlrev_b32 v{dst}, 16, v{RAW+a}',f'v_and_b32 v{dst}, 0xffff0000, v{RAW+a}',f'v_lshlrev_b32 v{dst}, 16, v{RAW+6+a}'][ch])
def hmul(d,a,b,conj):
    n1,n2=(' neg_hi:[0,1]','') if conj else ('',' neg_lo:[0,1,0]')
    return [I(f'v_pk_mul_f16 v{d}, v{a}, v{b} op_sel:[0,0] op_sel_hi:[0,1]{n1}'),I(f'v_pk_fma_f16 v{d}, v{a}, v{b}, v{d} op_sel:[1,1,0] op_sel_hi:[1,0,1]{n2}')]
def kgen_pre(s):
    L=[('wvm','par'),I(f'v_lshlrev_b32 v{LDT}, 16, v{LDT}'),I(f'v_mul_f32 v{LDT}, {hex(fb(1.4426950408889634))}, v{LDT}'),I(f'v_exp_f32 v{LDT}, v{LDT}'),I(f'v_mov_b32 v{ONE}, 0x3c00'),
       I(f'v_cvt_pk_bf16_f32 v{DT}, v{LDT}, v{LDT}'),I(f'v_lshlrev_b32 v{DT}, 16, v{DT}'),
       I(f'v_mul_f32 v{DTL}, {hex(fb(1.4426950408889634))}, v{DT}'),I(f'v_mul_f32 v{DTP}, {hex(fb(0.15915494309189535))}, v{DT}')]
    for ch in range(3):
        L+=[unp(d,2+a,ch) for a,d in enumerate([B_,B_+1,C_,C_+1])]+s.cmul(CC+2*ch,C_,B_)
        L.append(I(f'v_max3_f32 v{TM}, |v{CC+2*ch}|, |v{CC+2*ch+1}|, '+(f'v{TM}' if ch else '0')))
    t=''
    for c in['quad_perm:[1,0,3,2]','quad_perm:[2,3,0,1]','row_half_mirror','row_mirror']: t+=f's_nop 1\nv_max_f32_dpp v{TM}, v{TM}, v{TM} {c} row_mask:0xf bank_mask:0xf\n'
    t+=f's_nop 0\nv_readlane_b32 s9, v{TM}, 0\nv_readlane_b32 s10, v{TM}, 16\nv_readlane_b32 s11, v{TM}, 32\nv_readlane_b32 s15, v{TM}, 48\n'
    t+='s_max_u32 s9, s9, s10\ns_max_u32 s11, s11, s15\ns_max_u32 s9, s9, s11\ns_lshr_b32 s9, s9, 23\ns_max_u32 s9, s9, 11\ns_min_u32 s9, s9, 253\n'
    t+=f's_sub_u32 s10, 264, s9\ns_lshl_b32 s10, s10, 23\ns_sub_u32 s9, s9, 10\ns_lshl_b32 s9, s9, 23\nv_mul_f32 v{KSC}, s9, v{DT}\n'
    for k in range(6): t+=f'v_mul_f32 v{CC+k}, s10, v{CC+k}\n'
    L.append(I(t))
    for ch in range(3): L+=[unp(ZS[ch],0,ch),unp(ZS[ch]+1,1,ch),I(f'v_mul_f32 v{ZS[ch]}, v{ZS[ch]}, v{DTL}'),I(f'v_mul_f32 v{ZS[ch]+1}, v{ZS[ch]+1}, v{DTP}')]
    for ch in range(3): L.append(I(f'v_cvt_pk_f16_f32 v{CH+ch}, v{CC+2*ch}, -v{CC+2*ch+1}'))
    return L
ZS=[42,112,114]
def units(L,R,U,ilv):
    i=0
    while i<len(U):
        u=U[i]
        if u[0] is None: R.put(u[4],u[1]); i+=1; continue
        grp=[u]
        while ilv and len(grp)<=ilv and i+len(grp)<len(U):
            n=U[i+len(grp)]
            if n[0] is None or n[1] in [x[0] for x in grp]: break
            grp.append(n)
        ms=[hmul(*x[:4]) for x in grp]
        L+=[m[0] for m in ms]+[m[1] for m in ms]
        for x in grp:
            if x[4] is not None: R.put(x[4],x[0])
        i+=len(grp)
def kgen_chunk(s,ch):
    h=lambda x:HH+x.bit_length()-1; C2=[]
    for x0,n,a,b,t in[(1,4,68,70,66),(32,5,74,76,72)]:
        c=Ex(a,x0,t,ZS[ch]); c.append(I(f'v_cvt_pk_f16_f32 v{h(x0)}, v{a}, v{a+1}'))
        for k in range(1,n+1):
            c+=[I(f'v_mul_f32 v{t}, v{a+1}, v{a+1}'),I(f'v_add_f32 v{t+1}, v{a}, v{a}'),I(f'v_fma_f32 v{b}, v{a}, v{a}, -v{t}'),I(f'v_mul_f32 v{b+1}, v{t+1}, v{a+1}'),
                I(f'v_cvt_pk_f16_f32 v{h(x0<<k)}, v{b}, v{b+1}')]; a,b=b,a
        C2.append(c)
    H=merge(C2[1],[[x] for x in C2[0]]) if s.o.ilv else C2[0]+C2[1]
    R=Rows(H); rb={0:ONE}; U=[(None,ONE,0,0,0)]
    for j in range(1,32):
        hb=1<<(j.bit_length()-1)
        if j==hb: rb[j]=h(8*j); U.append((None,rb[j],0,0,j))
        else: rb[j]=RW+j; U.append((RW+j,rb[j-hb],h(8*hb),0,j))
    units(H,R,U,s.o.ilv)
    T=[]
    for k in range(8): T.append(('lds',f'ds_read_b128 {v(BF+4*k,4)}, v{FA} offset:{32*k}',('b',k)))
    R=Rows(T); row=lambda half,r:8*(r//4)+4*half+r%4
    P={0:CH+ch}; nx=[RW]; U=[(None,P[0],0,0,row(0,0))]
    def mk(x,y,r):
        d=nx[0]; nx[0]+=1; U.append((d,P[x-y],h(y),1,r)); P[x]=d
    for hi in range(1,8): mk(hi,1<<(hi.bit_length()-1),row(0,hi))
    mk(8,8,None)
    for n,k in enumerate([0,2,4,6,8]): mk(256+k,256,row(0,8+n))
    for n,k in enumerate([0,4,8]): mk(512+k,512,row(0,13+n))
    for n,k in enumerate([0,4,8]): mk(768+k,512,row(1,n))
    for m in range(4):
        for n,k in enumerate([0,8]): mk(1024+256*m+k,1024,row(1,3+2*m+n))
    units(T,R,U,s.o.ilv); R.flush()
    for k in range(8): T.append(('lds',f'ds_read_b128 {v(AFR+4*k,4)}, v{FA} offset:{32*k}',('a',k)))
    M=[]
    for k in range(8):
        c=v(KA,16) if (ch or k or s.o.kloop) else '0'
        t=f'v_mfma_f32_32x32x16_f16 {v(KA,16)}, {v(AFR+4*k,4)}, {v(BF+4*k,4)}, {c}'
        if s.o.mprio: t=f's_setprio 3\n{t}\ns_setprio {s.o.priox}'
        M.append([('wlg',('a',k)),I(t)])
    return H,T,M
def kgen_expand(s):
    L=[]; VE,VZ,t=10,11,12; X=BF; cv=lambda d,a,b:L.append(I(f'v_cvt_pk_bf16_f32 v{d}, v{a}, v{b}'))
    L+=[I(f'v_and_b32 v{t}, 31, v0'),I(f'v_lshlrev_b32 v{t}, 4, v{t}'),I(f's_add_u32 s9, s{sKS}, 496'),I(f'v_sub_u32 v{VE}, s9, v{t}'),
        I(f'v_add_u32 v{VZ}, s{sKS}, v{t}'),I(f'v_and_b32 v{t}, 1, v0'),I(f'v_cmp_eq_u32 vcc, 1, v{t}'),I(f'v_lshlrev_b32 v{DSK}, 16, v{DSK}')]
    for k in range(4): L.append(I(f'v_mov_b32 v{X+k}, 0'))
    L.append(I('s_nop 0'))
    for k in range(16): L.append(I(f'v_mul_f32 v{KA+k}, v{KA+k}, v{KSC}'))
    L.append(I(f's_mov_b64 exec, 1\nv_add_f32 v{KA}, v{KA}, v{DSK}\ns_mov_b32 exec_lo, -1'))
    n=[1]
    def chunk(e,base):
        x=X+4*n[0]; n[0]+=1
        for k in range(4): cv(x+k,e[7-2*k],e[6-2*k])
        L.append(('lds',f'ds_write_b128 v{VE}, {v(x,4)} offset:{2*(1792-base)}'))
    a=lambda r:KA+r
    L.append(('lds',f'ds_write_b128 v{VZ}, {v(X,4)} offset:4096'))
    chunk([a(r) for r in range(8)],0)
    chunk([a(8+k) for k in[0,0,1,2,2,2,3,4]],256)
    chunk([a(13+k) for k in[0,0,0,1,1,1,2,2]],512)
    L.append(I('s_mov_b32 exec_lo, 0\ns_mov_b32 exec_hi, -1'))
    chunk([a(k) for k in[0,0,0,1,1,1,2,2]],768)
    for m in range(4):
        z0,z8=a(3+2*m),a(4+2*m); L.append(I(f'v_cndmask_b32 v{t}, v{z0}, v{z8}, vcc'))
        chunk([z0,z0,z0,z0,t,z8,z8,z8],1024+256*m)
    L.append(I('s_mov_b64 exec, -1'))
    return L
UA,UO,UD=244,248,224
def xpose(s,part):
    g=s.g
    if part==0:
        g(f's_lshl_b32 s10, s14, 12\ns_add_u32 s10, s10, {SLOT(0)}')
        g('v_lshrrev_b32 v240, 4, v0\nv_bfe_u32 v241, v0, 2, 2\nv_lshl_add_u32 v241, v240, 3, v241\nv_lshlrev_b32 v241, 7, v241\nv_bfe_u32 v242, v0, 1, 1\nv_bfe_u32 v243, v0, 3, 1\nv_xor_b32 v242, v242, v243')
        g('v_bfe_u32 v243, v0, 4, 1\nv_lshl_add_u32 v242, v243, 2, v242\nv_lshl_add_u32 v241, v242, 4, v241\nv_and_b32 v242, 1, v0\nv_lshl_add_u32 v241, v242, 3, v241')
        for m in range(4): g(f'v_xor_b32 v242, {32*m}, v241\nv_add_u32 v{UA+m}, s10, v242')
        g(f'v_and_b32 v242, 15, v0\nv_mul_u32_u24 v242, {ROWS}, v242\nv_lshl_add_u32 v{UO}, v240, 4, v242')
        g(f's_mul_i32 s9, s76, {64*ROWS}\ns_lshl_b32 s10, s{sI}, 8\ns_add_u32 s9, s9, s10\ns_lshl_b32 s10, s14, 6\ns_add_u32 s9, s9, s10')
        return
    for db in range(4):
        for h in range(2): g.lds(f'ds_read_b64_tr_b16 {v(UD+4*db+2*h,2)}, v{UA+(db^h)} offset:{512*h}',('ut',db))
    for db in range(4):
        g(f's_add_u32 s10, s9, {WS_UT+16*db*ROWS}'); g.wait_lg(('ut',db))
        g.vmem(f'buffer_store_dwordx4 {v(UD+4*db,4)}, v{UO}, s[{rWS}:{rWS+3}], s10 offen sc1','uts')
def xloop(s,role,pre=None,post=None,extra={}):
    g=s.g; o=s.o
    if role!='3' and o.twd==2:
        g(f's_mul_i32 s9, s{sWG}, 3\ns_add_u32 s9, s9, s14\ns_mul_i32 s9, s9, 2560\ns_add_u32 s64, s{pWD}, s9\ns_addc_u32 s65, s{pWD+1}, 0')
    if role!='3' and o.twd==3:
        g(f's_lshr_b32 s9, s{sWG}, 3\ns_mul_i32 s9, s9, 3\ns_add_u32 s9, s9, s14\ns_mul_i32 s9, s9, 20480\ns_lshr_b32 s10, s{sDJ}, 2\ns_mul_i32 s10, s10, 640\ns_add_u32 s9, s9, s10')
        g(f's_add_u32 s64, s{pWD}, s9\ns_addc_u32 s65, s{pWD+1}, 0\ns_and_b32 s66, s{sWG}, 6\ns_mul_i32 s66, s66, 2560')
    for iv in range(9):
        if pre: pre(iv)
        st=s.stage(iv+2,role=='3') if 1<=iv<=7 else []
        ex=extra.get(iv,[])
        emit(g,merge(ex,st,0,len(ex)*o.dfrac//100) if ex else s.flat(st))
        if role!='3' and o.twd==2 and 0<=iv-o.tw0<4:
            for k in range(10): g(f's_load_dword s67, s[64:65], {64*(k+10*(iv-o.tw0))}')
        if role!='3' and o.twd==3 and iv>=1:
            for k in range(10): g(f's_load_dword s67, s[64:65], s66 offset:{1280*(k//5)+128*(k%5)}')
            g('s_add_u32 s66, s66, 2560\ns_cmp_eq_u32 s66, 20480\ns_cselect_b32 s66, 0, s66')
        if post: post(iv)
        s.dstamp(1,iv); g.wait_vm(('st',iv+1))
        if post: post(100+iv)
        s.dstamp(2,iv); g('s_barrier'); s.dstamp(3,iv)
    if pre: pre(9)
def xpaths(s):
    g=s.g; o=s.o; g.reset()
    if o.priox: g(f's_setprio {o.priox}')
    g(f's_and_b32 s14, s{sWAVE}, 3\ns_mul_i32 s80, s14, 8704\ns_add_u32 s80, s80, {L_KS+4608}')
    if o.bal: g(f's_lshr_b32 s9, s{sWG}, 3\ns_xor_b32 s9, s9, s{sWG}\ns_and_b32 s9, s9, 1\ns_mul_i32 s9, s9, 9\ns_xor_b32 s{sP}, s9, s{sWG}')
    else: g(f's_mov_b32 s{sP}, s{sWG}')
    g(f's_cmp_eq_u32 s14, 3\ns_cbranch_scc1 X3PATH\ns_and_b32 s9, s{sP}, 1\ns_add_u32 s10, s9, s14\ns_cmp_eq_u32 s10, 3\ns_cbranch_scc1 LOADONLY')
    g(f's_lshr_b32 s10, s{sP}, 1\ns_mul_i32 s10, s10, 5\ns_mul_i32 s9, s9, 3\ns_add_u32 s10, s10, s9\ns_add_u32 s{sD}, s10, s14')
    g(f's_mul_i32 s9, s{sD}, 384\nv_lshl_add_u32 v14, v0, 2, s9\nv_lshl_add_u32 v15, v0, 1, s9\ns_lshl_b32 s9, s{sD}, 1\nv_mov_b32 v16, s9')
    g('s_waitcnt lgkmcnt(0)')
    g.vmem(f'global_load_ushort v{LDT}, v16, s[{pLDT}:{pLDT+1}]','par')
    for a,p in enumerate([pAR,pAI,pBR,pBI,pCR,pCI]):
        g.vmem(f'global_load_dword v{RAW+a}, v14, s[{p}:{p+1}]','par'); g.vmem(f'global_load_ushort v{RAW+6+a}, v15, s[{p}:{p+1}] offset:256','par')
    g.vmem(f'global_load_ushort v{DSK}, v16, s[{pDS}:{pDS+1}]','par')
    s.loader_setup()
    g(f's_sub_u32 s{sKS}, s80, 4608\ns_mul_i32 s{sUB}, s14, 16640\ns_add_u32 s{sUB}, s{sUB}, {L_U}')
    g(f'v_lshl_add_u32 v{SA}, v0, 2, s{sKS}')
    for k in range(1,8): g(f'v_add_u32 v{SA+k}, {1088*k}, v{SA}')
    g(f'v_and_b32 v{FA}, 31, v0\nv_mul_u32_u24 v{FA}, 272, v{FA}\nv_lshrrev_b32 v19, 5, v0\nv_lshlrev_b32 v19, 4, v19\nv_add3_u32 v{FA}, v{FA}, v19, s{sKS}')
    if o.diag==4: s.dstamp(4,2); g.wait_vm('par'); s.dstamp(4,3)
    main=kgen_pre(s); M=None
    if o.kloop:
        H,T,M=s.kgen_chunk(0)
        for k in range(16): g(f'v_mov_b32 v{KA+k}, 0')
        emit(g,main); g('s_mov_b32 s15, 0\ns_cmp_lg_u32 s15, 0'); g.lab('KL')
        Mb=[[m[0],I(f's_cbranch_scc0 KM{k}'),m[1],I(f'KM{k}:')] for k,m in enumerate(M)]
        body=merge(H,Mb,4,4+8*o.mgap)+T
        t=G(); emit(t,body); g.lg=list(t.lg); emit(g,body); assert g.lg==t.lg
        g(f'v_mov_b32 v42, v112\nv_mov_b32 v43, v113\nv_mov_b32 v112, v114\nv_mov_b32 v113, v115\nv_mov_b32 v{CH}, v{CH+1}\nv_mov_b32 v{CH+1}, v{CH+2}')
        g('s_add_u32 s15, s15, 1\ns_cmp_lt_u32 s15, 3\ns_cbranch_scc1 KL'); main=[]
    else:
      for ch in range(3):
        H,T,M2=s.kgen_chunk(ch)
        if M: H=merge(H,M,4,4+8*o.mgap)
        main+=H+T; M=M2
    main+=[it for m in M for it in m]
    if o.nokgen: main=[I('s_nop 0')]*20
    n0=len(main)*o.kpre//100; rest=main[n0:]; extra={}
    for k in range(o.kiv): extra[k]=rest[len(rest)*k//o.kiv:len(rest)*(k+1)//o.kiv]
    emit(g,main[:n0]); s.dstamp(4,4); g('s_barrier'); s.stamp(1); s.dstamp(4,5)
    def post(iv):
        if iv==(o.kiv-1 if rest else 0): emit(g,s.kgen_expand())
    def pre(iv):
        if iv<8: return
        if iv==8: g(f's_mul_i32 s{sT0}, s{sD}, {ROWS}\nv_lshlrev_b32 v9, 4, v0')
        else: s.stamp(2)
        for c in (range(4-o.usp) if iv==8 else range(4-o.usp,4)):
            g(f's_add_u32 m0, s{sUB}, {32+4160*c}\ns_add_u32 s{sT1}, s{sT0}, {WS_UT-6+2*c}')
            for q in range(4): g.vmem(f'buffer_load_dwordx4 v9, s[{rWS}:{rWS+3}], s{sT1} offen offset:{1024*q} sc1 lds','u')
    s.xloop('K',pre,post,extra)
    s.conv()
    g.lab('LOADONLY'); g.reset(); s.loader_setup(); g('s_barrier'); s.xloop('L'); g('s_endpgm')
    g.lab('X3PATH'); g.reset(); s.x3path()
def conv(s):
    g=s.g; o=s.o; VU,VK,VS=2,3,4; CA=32; UF=[64,128]; KF=[96,160]
    g(f'v_and_b32 v5, 3, v0\nv_mul_u32_u24 v5, 4160, v5\nv_bfe_u32 v6, v0, 2, 2\nv_lshl_add_u32 v5, v6, 3, v5\nv_lshrrev_b32 v7, 4, v0\nv_lshl_add_u32 v5, v7, 4, v5')
    g(f's_add_u32 s9, s{sUB}, 8\nv_add_u32 v{VU}, s9, v5\nv_and_b32 v8, 15, v0\nv_lshlrev_b32 v5, 5, v8\nv_lshlrev_b32 v6, 4, v7\nv_sub_u32 v6, v6, v5')
    g(f's_add_u32 s10, s{sKS}, 480\nv_add_u32 v{VK}, s10, v6')
    g(f'v_bfe_u32 v6, v0, 4, 1\nv_lshl_add_u32 v5, v6, 9, v5\nv_lshrrev_b32 v6, 5, v0\nv_lshl_add_u32 v{VS}, v6, 4, v5')
    g(f'v_mul_u32_u24 v5, 4160, v7\nv_lshl_add_u32 v5, v8, 1, v5\nv_add_u32 v5, s9, v5\nv_add_u32 v6, v7, v8\nv_cmp_gt_u32 vcc, 15, v6')
    for r in range(32): g(f'v_mov_b32 v{CA+r}, 0')
    g(f's_add_u32 s{sT0}, s{sT0}, {WS_YT}\ns_mov_b32 s15, 0')
    g('s_barrier'); s.stamp(3)
    if o.prio: g(f's_setprio {o.prio3}')
    g.wait_vm('u'); s.stamp(4)
    g(f's_mov_b64 exec, vcc\nds_write_b16 v5, v{CA}\ns_mov_b64 exec, -1')
    def reads(b,off):
        R=[]
        for p in range(8):
            R.append(f'ds_read_b128 {v(KF[b]+4*p,4)}, v{VK} offset:{3584-512*p+off}')
            R+=[f'ds_read_b64 {v(UF[b]+4*p+2*h,2)}, v{VU} offset:{512*p+8*h+off}' for h in range(2)]
        return R
    rem={q:[(p,q-p) for p in range(q+1)] for q in range(8)}; order=[]; last=[]
    while any(rem.values()):
        c=[q for q in rem if rem[q] and q not in last[-3:]] or [q for q in rem if rem[q] and q not in last[-2:]] or [q for q in rem if rem[q]]
        q=max(c,key=lambda q:len(rem[q])); order.append((q,)+rem[q].pop(0)); last.append(q)
    for t in reads(0,0): g(t)
    g.lab('CV')
    for b in range(2):
        R=reads(1-b,64 if b==0 else 0); g('s_waitcnt lgkmcnt(0)')
        for k,(q,p,m) in enumerate(order):
            g(f'v_mfma_f32_16x16x32_bf16 {v(CA+4*q,4)}, {v(UF[b]+4*p,4)}, {v(KF[b]+4*m,4)}, {v(CA+4*q,4)}')
            if k<24: g(R[k])
            if k==26 and b==0: g(f'v_add_u32 v{VU}, 128, v{VU}\nv_add_u32 v{VK}, 128, v{VK}')
            if k==34 and b==1: g(f's_add_u32 s15, s15, 1\ns_cmp_lt_u32 s15, {1 if o.noconv else 4}')
    g('s_cbranch_scc1 CV'); s.stamp(5)
    g(f's_lshr_b32 s9, s{sD}, 4\ns_lshl_b32 s9, s9, 7\ns_and_b32 s10, s{sD}, 15\ns_lshl_b32 s10, s10, {0 if o.sp else 2}\ns_add_u32 s9, s9, s10\ns_add_u32 s9, s9, {FL_Y}\nv_mov_b32 v5, s9\nv_mov_b32 v6, 1')
    for q in range(8):
        for h in range(2): g(f'v_cvt_pk_bf16_f32 v{10+2*q+h}, v{CA+4*q+2*h}, v{CA+4*q+2*h+1}')
    for q in range(0,8,2):
        x=10+2*q; g(f'v_permlane16_swap_b32 v{x}, v{x+2}\nv_permlane16_swap_b32 v{x+1}, v{x+3}')
        g(f'buffer_store_dwordx4 {v(x,4)}, v{VS}, s[{rWS}:{rWS+3}], s{sT0} offen offset:{512*q} sc1')
    g(f's_waitcnt vmcnt(0)\ns_mov_b64 exec, 1\nbuffer_store_{"byte" if o.sp else "dword"} v6, v5, s[{rWS}:{rWS+3}], 0 offen sc1')
    s.stamp(6); s.dump_stamps(); g('s_endpgm')
def x3path(s):
    g=s.g; o=s.o; M=f's[{sKS}:{sKS+1}]'
    s.loader_setup()
    srd(g,rGW,pGW,1280); g(f'v_lshlrev_b32 v9, 4, v0\ns_mov_b32 m0, {L_GW}')
    for k in range(4): g(f'v_mov_b32 v{28+k}, 0')
    for q in range(2): g.vmem(f'buffer_load_dwordx4 v9, s[{rGW}:{rGW+3}], 0 offen offset:{1024*q} lds','gw')
    if o.tlb:
        srd(g,rWD,pOUT,2621440); g(f'v_min_u32 v40, {(WS_END>>o.tlb)-1}, v0\nv_lshlrev_b32 v40, {o.tlb}, v40\nv_lshlrev_b32 v41, {o.tlb}, v0')
        g.vmem(f'buffer_load_dword v40, v40, s[{rWS}:{rWS+3}], 0 offen','tl'); g.vmem(f'buffer_load_dword v41, v41, s[{rWD}:{rWD+3}], 0 offen','tl')
    g(f's_cmp_eq_u32 s{sWG}, 0\ns_cbranch_scc0 NOINIT')
    for k in range(10):
        if k%4==0: g(f's_mov_b32 s9, {WS_FL+1024*k}')
        g(f'buffer_store_dwordx4 v[28:31], v9, s[{rWS}:{rWS+3}], s9 offen offset:{1024*(k%4)} sc1')
    g(f's_waitcnt vmcnt(0)\nv_mov_b32 v11, 1\ns_mov_b64 exec, 1\nglobal_store_dword v31, v11, s[{pDBG}:{pDBG+1}] sc1\ns_mov_b64 exec, -1')
    g.lab('NOINIT')
    g(f'v_mov_b32 v10, {L_SY}\nds_write_b128 v10, v[28:31]\nds_write_b128 v10, v[28:31] offset:16')
    g(f's_and_b32 s9, s{sJ}, 1\ns_lshl_b32 s9, s9, 2\nv_lshrrev_b32 v20, 4, v0\nv_add_u32 v21, s9, v20\nv_and_b32 v22, 7, v0\nv_xor_b32 v21, v21, v22')
    g(f'v_lshrrev_b32 v18, 3, v0\ns_lshl_b32 s9, s{sJ}, 10\nv_lshlrev_b32 v23, 7, v18\nv_lshl_add_u32 v23, v21, 4, v23\nv_add_u32 v10, s9, v23\nv_add_u32 v11, {2*STAGE}, v10')
    g(f'v_lshlrev_b32 v12, 4, v22\nv_add_u32 v12, {L_GW}, v12\ns_lshl_b32 s79, s76, 7')
    s.dstamp(4,3); g('s_waitcnt lgkmcnt(0)'); g.wait_vm('gw'); s.dstamp(4,4); g('s_barrier'); s.stamp(1); s.dstamp(4,5)
    def gate(st): g(f'v_add_u32 v13, s79, v12\nds_read_b128 v[20:23], v{11 if SLOT(st)==2*STAGE else 10} offset:{SLOT(st)%(2*STAGE)}\nds_read_b128 v[24:27], v13\ns_add_u32 s79, s79, 128\ns_cmp_eq_u32 s79, 1280\ns_cselect_b32 s79, 0, s79')
    def dots():
        g.wait_lg()
        for k in range(4):
            g(f'v_lshlrev_b32 v28, 16, v{20+k}\nv_lshlrev_b32 v29, 16, v{24+k}\nv_and_b32 v{20+k}, 0xffff0000, v{20+k}\nv_and_b32 v{24+k}, 0xffff0000, v{24+k}')
            g(f'v_fmac_f32 v30, v28, v29\nv_fmac_f32 v30, v{20+k}, v{24+k}')
    def pre(iv):
        if iv==9: return
        gate(iv)
        if iv==o.utw+1:
            g.wait_vm('go'); g('v_readfirstlane_b32 s9, v32\ns_nop 0\ns_cmp_eq_u32 s9, 1\ns_cbranch_scc1 GOOK')
            s.spin(f'global_load_dword v32, v31, s[{pDBG}:{pDBG+1}] sc1','v_cmp_eq_u32 vcc, 1, v32','-1'); g.lab('GOOK')
            g(f's_add_u32 s11, s77, 66\ns_cmp_lt_u32 s{sJ}, 10\ns_cselect_b32 s9, s76, s11\ns_cselect_b32 s10, s{sI}, s78\ns_lshl_b32 s9, s9, 7\ns_lshl_b32 s10, s10, 2\ns_add_u32 s9, s9, s10\ns_add_u32 s9, s9, {FL_UT}')
            g(f'v_mov_b32 v33, s9\ns_mov_b64 exec, 1'); g.vmem(f'buffer_store_dword v32, v33, s[{rWS}:{rWS+3}], 0 offen sc1'); g('s_mov_b64 exec, -1')
    def post(iv):
        if iv==0: g.vmem(f'global_load_dword v32, v31, s[{pDBG}:{pDBG+1}] sc1','go')
        if iv==o.ufv-1:
            g(f's_lshr_b32 s10, s{sP}, 1\ns_mul_i32 s10, s10, 5\ns_and_b32 s9, s{sP}, 1\ns_mul_i32 s11, s9, 3\ns_add_u32 s10, s10, s11\ns_add_u32 s11, s10, 2\ns_sub_u32 s11, s11, s9')
            g(f's_mul_i32 s9, s9, 33\ns_sub_u32 s9, 34, s9\nv_min_u32 v39, s9, v0\ns_mul_i32 s9, s10, {ROWS}\ns_add_u32 s9, s9, {WS_UT}\nv_lshl_add_u32 v38, v0, 7, s9\nv_lshl_add_u32 v39, v39, 7, s9\nv_add_u32 v39, 8192, v39')
            g(f's_lshr_b32 s10, s10, 6\ns_lshr_b32 s11, s11, 6\ns_sub_u32 s11, s11, s10\ns_lshl_b32 s11, s11, 7\ns_lshl_b32 s10, s10, 7\ns_add_u32 s10, s10, {FL_UT}')
            g(f'v_bfe_u32 v33, v0, 4, 1\nv_mul_u32_u24 v33, s11, v33\nv_and_b32 v34, 15, v0\nv_lshl_add_u32 v33, v34, 2, v33\nv_add_u32 v33, s10, v33')
            g(f's_lshl_b32 s9, s{sDJ}, 7\ns_add_u32 s9, s9, {FL_WP}\nv_min_u32 v34, 11, v34\ns_mov_b32 exec_lo, 0\nv_lshl_add_u32 v33, v34, 2, s9\ns_mov_b32 exec_lo, -1')
            g.vmem(f'buffer_load_dword v36, v33, s[{rWS}:{rWS+3}], 0 offen sc1','uf')
        if o.warm and 0<=iv-o.warm<8//o.wn: s.warm(iv-o.warm)
        if iv<100: dots()
        if iv==100+o.ufv:
            g.wait_vm('uf'); g('v_cmp_eq_u32 vcc, 1, v36\ns_nop 0\ns_cmp_eq_u64 vcc, -1\ns_cbranch_scc1 UFOK')
            s.spin(f'buffer_load_dword v36, v33, s[{rWS}:{rWS+3}], 0 offen sc1','v_cmp_eq_u32 vcc, 1, v36','-1'); g.lab('UFOK')
        if o.utch and iv==o.utch:
            for k in range(2): g.vmem(f'buffer_load_dword v{38+k}, v{38+k}, s[{rWS}:{rWS+3}], 0 offen sc1','ut')
    s.xloop('3',pre,post)
    s.stamp(2); gate(9); dots(); g('s_barrier')
    for c in['quad_perm:[1,0,3,2]','quad_perm:[2,3,0,1]','row_half_mirror']: g(f's_nop 2\nv_add_f32_dpp v30, v30, v30 {c} row_mask:0xf bank_mask:0xf')
    g(f'v_mul_f32 v30, {hex(fb(-1.4426950408889634))}, v30\nv_exp_f32 v30, v30\ns_lshl_b32 s9, s{sI}, 9\nv_add_f32 v30, 1.0, v30\nv_rcp_f32 v30, v30')
    g(f's_lshl_b32 s10, s{sJ}, 5\ns_add_u32 s9, s9, s10\ns_add_u32 s9, s9, {WS_G}\nv_lshlrev_b32 v18, 2, v18\ns_mov_b32 exec_lo, 0x01010101\ns_mov_b32 exec_hi, 0x01010101')
    g(f'buffer_store_dword v30, v18, s[{rWS}:{rWS+3}], s9 offen sc1\ns_waitcnt vmcnt(0)'); s.arrive_h(20,21); s.stamp(3)
    if o.sp==2: s.lspin(34,35,L_SY+4,4); s.stamp(4)
    elif o.sp==3:
        g(f's_lshr_b32 s9, s{sTI}, 1\ns_lshl_b32 s9, s9, 7\ns_add_u32 s9, s9, {FL_H}'); s.lspin(34,35,L_SY+4,o.hn)
        t=f's_buffer_load_dwordx16 s[16:31], s[{rWS}:{rWS+3}], s9 glc\ns_waitcnt lgkmcnt(0)\n'
        for k in range(4): t+=f's_and_b64 s[{16+4*k}:{17+4*k}], s[{16+4*k}:{17+4*k}], s[{18+4*k}:{19+4*k}]\ns_and_b32 s{16+k}, s{16+4*k}, s{17+4*k}\nv_mov_b32 v{36+k}, s{16+k}\n'
        s.sspin(t+'ds_write_b128 v34, v[36:39] offset:12',range(16,20),1,'ds_read_b32 v35, v34\ns_waitcnt lgkmcnt(0)\n'*o.pace)
        g('v_mov_b32 v36, 1\nv_mov_b32 v37, 1\nds_write_b64 v34, v[36:37] offset:12\nds_write_b64 v34, v[36:37] offset:20'); s.stamp(4)
    elif o.sp:
        g(f's_lshr_b32 s9, s{sTI}, 1\ns_lshl_b32 s9, s9, 2\ns_and_b32 s10, s{sTI}, 1\ns_add_u32 s9, s9, s10\ns_lshl_b32 s9, s9, 5\ns_add_u32 s9, s9, {FL_H}')
        s.sspin(f's_buffer_load_dwordx8 s[16:23], s[{rWS}:{rWS+3}], s9 glc',range(16,24),1); s.stamp(4)
    else:
        g(f's_lshr_b32 s9, s{sTI}, 1\ns_lshl_b32 s9, s9, 7\ns_add_u32 s9, s9, {FL_H}\nv_lshrrev_b32 v20, 2, v0\nv_lshl_add_u32 v33, v20, 2, s9\nv_mov_b32 v34, {L_SY+8}\ns_mov_b64 {M}, 0')
        nq=3*o.ht
        g(f's_mul_i32 s9, s{sTI}, 196608\ns_and_b32 s10, s{sDJ}, {8//max(o.ht,1)-1}\ns_mul_i32 s10, s10, {512*nq}\ns_add_u32 s9, s9, s10\nv_mul_u32_u24 v20, 12288, v20\nv_and_b32 v21, 3, v0\nv_lshl_add_u32 v20, v21, 7, v20')
        g('s_mov_b32 s15, 0'); g.lab('HP'); g(f'buffer_load_dword v32, v33, s[{rWS}:{rWS+3}], 0 offen sc1\ns_waitcnt vmcnt(0)\nv_cmp_eq_u32 vcc, 1, v32\ns_add_u32 s15, s15, 1\ns_nop 0')
        g(f'v_mov_b32 v36, vcc_lo\nv_mov_b32 v37, vcc_hi\ns_andn2_b64 s[10:11], vcc, {M}\ns_cbranch_scc0 HN\nds_write_b64 v34, v[36:37]\ns_mov_b64 {M}, vcc')
        if nq:
            g('s_mov_b64 exec, s[10:11]')
            for q in range(nq): g(f'buffer_load_dword v{40+q}, v20, s[{rWS}:{rWS+3}], s9 offen offset:{512*q} sc1')
            g('s_mov_b64 exec, -1')
        g.lab('HN'); g(f's_cmp_gt_u32 s15, {SPIN}\ns_cbranch_scc1 HQ\ns_cmp_eq_u64 vcc, -1\ns_cbranch_scc0 HP'); g.lab('HQ')
        g(f'v_mov_b32 v36, -1\nv_mov_b32 v37, -1\nds_write_b64 v34, v[36:37]'); s.stamp(4)
    g(f's_lshl_b32 s9, s{sTI}, 8\ns_add_u32 s9, s9, {WS_G}\ns_mov_b32 m0, {L_G}\nv_lshlrev_b32 v20, 2, v0\nbuffer_load_dword v20, s[{rWS}:{rWS+3}], s9 offen sc1 lds')
    g(f's_mul_i32 s9, s{sDJ}, 640\ns_add_u32 s9, s9, {FL_Y}\nv_lshrrev_b32 v20, 3, v0\nv_and_b32 v21, 7, v0\nv_lshlrev_b32 v22, 3, v21\nv_lshl_add_u32 v22, v20, 7, v22\nv_add_u32 v33, s9, v22')
    g(f'v_mul_u32_u24 v20, {ROWS}, v20\nv_lshl_add_u32 v20, v21, 4, v20\ns_mul_i32 s9, s{sDJ}, {80*ROWS}\ns_lshl_b32 s10, s{sTI}, 7\ns_add_u32 s9, s9, s10')
    if o.sp:
        if o.sp>=2 and o.yn: s.lspin(34,35,L_SY+8,o.yn)
        g(f's_mul_i32 s10, s{sDJ}, 640\ns_add_u32 s10, s10, {FL_Y}')
        s.sspin('\n'.join(f's_buffer_load_dwordx4 s[{16+4*k}:{19+4*k}], s[{rWS}:{rWS+3}], s10 offset:{128*k} glc' for k in range(5)),range(16,36),0x01010101)
    else:
        g(f's_mov_b32 s{sKS}, -1\ns_mov_b32 s{sKS+1}, 0xff\ns_mov_b64 exec, {M}')
        s.spin(f'buffer_load_dwordx2 v[36:37], v33, s[{rWS}:{rWS+3}], 0 offen sc1','v_and_b32 v36, v36, v37\nv_cmp_eq_u32 vcc, 1, v36',M)
    g('s_mov_b64 exec, -1'); s.stamp(5)
    for q in range(10):
        g(f's_mov_b32 m0, {L_KS+4608+(q>>2)*8704+(q&3)*1024}\ns_add_u32 s10, s9, {WS_YT+8*q*ROWS}\nbuffer_load_dwordx4 v20, s[{rWS}:{rWS+3}], s10 offen sc1 lds')
    g('s_waitcnt vmcnt(0)'); s.stamp(6); g('s_barrier'); s.dump_stamps((7,[(k,8+k) for k in range(1,7)])); g('s_endpgm')
def warm(s,k):
    g=s.g
    if k==0: g(f's_lshl_b32 s9, s{sDJ}, 2\ns_and_b32 s10, s{sTI}, 3\ns_add_u32 s9, s9, s10\ns_mul_i32 s9, s9, 61440\ns_add_u32 s9, s9, {WS_WP}\nv_lshl_add_u32 v37, v0, 7, s9')
    for q in range(s.o.wn):
        if k*s.o.wn+q==7: g('v_subrev_u32 v37, 4096, v37')
        g.vmem(f'buffer_load_dword v{40+q}, v37, s[{rWS}:{rWS+3}], 0 offen sc1','wm'); g('v_add_u32 v37, 8192, v37')
```

```python
import sys, os
sys.path.insert(0, os.path.dirname(os.path.abspath(__file__)))
from asmlib import G, v, s_, check
from consts import *
class Gen:
    def __init__(s,o):
        s.o=o; s.g=G(); s.nst=0; s.xw=True; s.uid=0
    def L(s,p): s.uid+=1; return f'{p}_{s.uid}'
    def dstamp(s,nm,iv):
        if s.o.diag==nm and 0<=iv-s.o.d0<7: s.stamp(1+iv-s.o.d0,True)
    def stamp(s,k,d=False):
        if s.o.diag and k and not d and not (s.o.diag==6 and s.xw): return
        if s.o.stamps: s.g(f's_memrealtime s[{84+2*k}:{85+2*k}]' if not s.o.clk else f's_memtime s[{84+2*k}:{85+2*k}] ; memrealtime')
    def dump_stamps(s,who=None):
        if not s.o.stamps: return
        g=s.g
        g('s_waitcnt lgkmcnt(0)\ns_mov_b64 exec, 1')
        if s.o.stamps==2:
            if who is None: return
            l=s.L('DS'); g(f's_cmp_eq_u32 s{sWAVE}, {who[0]}\ns_cbranch_scc0 {l}\ns_not_b32 s84, s84\nv_mov_b32 v1, 0')
            for k,slot in who[1]: g(f'v_mov_b32 v2, s{84+2*k}\nglobal_atomic_umax v1, v2, s[{pDBG}:{pDBG+1}] offset:{4*slot}')
            g.lab(l); return
        g(f's_lshl_b32 s9, s{sWG}, 3\ns_add_u32 s9, s9, s{sWAVE}\ns_lshl_b32 s9, s9, 5\ns_add_u32 s9, s9, {WS_ST}\nv_mov_b32 v1, s9')
        for k in range(8): g(f'v_mov_b32 v{4+k}, s{84+2*k}')
        g(f'buffer_store_dwordx4 v[4:7], v1, s[{rWS}:{rWS+3}], 0 offen\nbuffer_store_dwordx4 v[8:11], v1, s[{rWS}:{rWS+3}], 0 offen offset:16')
    def prologue(s):
        g=s.g; o=s.o
        g(f's_cmp_ge_u32 s{sWG}, 256\ns_cbranch_scc1 END')
        g('s_load_dwordx16 s[16:31], s[0:1], 0\ns_load_dwordx16 s[32:47], s[0:1], 64\ns_load_dwordx2 s[48:49], s[0:1], 128')
        if o.cwarm:
            g('s_getpc_b64 s[50:51]'); g.lab('PC0')
            g('v_lshlrev_b32 v1, 6, v0\nv_min_u32 v1, END-PC0, v1\nglobal_load_dword v255, v1, s[50:51]')
        if o.stamps:
            for k in range(1,8): g(f's_mov_b32 s{84+2*k}, 0')
        s.stamp(0)
        g('v_lshrrev_b32 v1, 6, v0\nv_and_b32 v0, 63, v0')
        g(f'v_readfirstlane_b32 s{sWAVE}, v1')
        g(f's_and_b32 s9, s{sWG}, 7\ns_lshr_b32 s10, s{sWG}, 3')
        g(f's_lshr_b32 s11, s9, 2\ns_lshl_b32 s11, s11, 3\ns_and_b32 s12, s10, 7\ns_add_u32 s{sI}, s11, s12')
        g(f's_and_b32 s11, s9, 3\ns_lshl_b32 s11, s11, 2\ns_lshr_b32 s12, s10, 3\ns_add_u32 s{sJ}, s11, s12')
        if o.jmap:
            jt=[0,7,3,4, 11,12,8,15, 6,2,9,5, 1,13,14,10]; c=sum(x<<(4*k) for k,x in enumerate(jt))
            g(f's_mov_b32 s12, {hex(c&0xffffffff)}\ns_mov_b32 s13, {hex(c>>32)}\ns_lshl_b32 s11, s{sJ}, 2\ns_lshr_b64 s[12:13], s[12:13], s11\ns_and_b32 s{sJ}, s12, 15')
        if o.g2map==0:
            g(f's_lshl_b32 s11, s9, 2\ns_and_b32 s12, s10, 3\ns_add_u32 s{sTI}, s11, s12\ns_lshr_b32 s{sDJ}, s10, 2')
        else:
            g(f's_lshr_b32 s11, s9, 1\ns_lshl_b32 s11, s11, 3\ns_and_b32 s12, s10, 7\ns_add_u32 s{sTI}, s11, s12')
            g(f's_and_b32 s11, s9, 1\ns_lshl_b32 s11, s11, 2\ns_lshr_b32 s12, s10, 3\ns_add_u32 s{sDJ}, s11, s12')
        g(f's_cmp_lt_u32 s{sWAVE}, 4\ns_cbranch_scc1 CPATH')
    VX,VW=2,6
    def xoffs(s,VX,t=10):
        g=s.g
        g(f's_mul_i32 s9, s{sI}, {128*1280}')
        g(f'v_lshrrev_b32 v{t}, 3, v0\nv_mul_u32_u24 v{t}, 1280, v{t}\nv_add_u32 v{t}, s9, v{t}')
        g(f'v_and_b32 v{t+1}, 7, v0\nv_lshrrev_b32 v{t+2}, 4, v0\nv_xor_b32 v{t+1}, v{t+1}, v{t+2}')
        g(f'v_lshl_add_u32 v{VX}, v{t+1}, 4, v{t}')
        g(f'v_xor_b32 v{t+1}, 4, v{t+1}'); g(f'v_lshl_add_u32 v{VX+1}, v{t+1}, 4, v{t}\nv_add_u32 v{VX+1}, {8*1280-1024}, v{VX+1}')
        g(f'v_add_u32 v{VX+2}, {16*1280-2048}, v{VX}\nv_add_u32 v{VX+3}, {16*1280-2048}, v{VX+1}')
    def loader_setup(s,st0=3):
        g=s.g; VX,VW=s.VX,s.VW
        g(f's_and_b32 s14, s{sWAVE}, 3')
        g(f's_lshl_b32 s12, s14, 12\ns_mul_i32 s13, s14, 3072\ns_mul_i32 s{sKB0}, s14, 40960'); g(f's_add_u32 s13, s13, {WOFF}')
        s.xoffs(VX)
        c=sum(x<<(4*k) for k,x in enumerate([0,1,2,3,4,5,6,7,8,9,0,1,4,4,7,7]))
        g(f's_mov_b32 s76, {hex(c&0xffffffff)}\ns_mov_b32 s77, {hex(c>>32)}\ns_lshl_b32 s9, s{sJ}, 2\ns_lshr_b64 s[76:77], s[76:77], s9\ns_and_b32 s76, s76, 15')
        g(f's_lshl_b32 s9, s{sJ}, 4\ns_add_u32 s9, s9, s{sI}\ns_sub_u32 s9, s9, 160\ns_max_i32 s9, s9, 0\ns_mul_i32 s77, s9, 43\ns_lshr_b32 s77, s77, 9\ns_mul_i32 s10, s77, 12\ns_sub_u32 s78, s9, s10')
        if st0: g(f's_add_u32 s9, s76, {st0}\ns_cmp_ge_u32 s9, 10\ns_cselect_b32 s10, 10, 0\ns_sub_u32 s9, s9, s10')
        r='s9' if st0 else 's76'
        g(f's_mul_i32 s{sWO}, {r}, 196608\ns_lshl_b32 s9, {r}, 7\ns_add_u32 s{sXO}, s9, s{sKB0}')
        g(f's_mul_i32 s9, s14, {16*3072}\ns_mul_i32 s10, s{sJ}, 192\ns_add_u32 s9, s9, s10')
        for q in range(3):
            g(f'v_add_u32 v10, {64*q}, v0\nv_mul_u32_u24 v11, 171, v10\nv_lshrrev_b32 v11, 11, v11')
            if s.o.m16: g('v_bfe_u32 v12, v11, 3, 1\nv_mul_u32_u24 v13, 12, v11\nv_sub_u32 v13, v10, v13\nv_lshlrev_b32 v12, 1, v12\nv_xor_b32 v12, v12, v13\nv_sub_u32 v12, v12, v13\nv_add_u32 v12, v12, v0')
            g(f'v_mul_u32_u24 v11, {3072-192}, v11\nv_lshl_add_u32 v11, v{12 if s.o.m16 else 0}, 4, v11\nv_add_u32 v{VW+q}, s9, v11')
        if s.o.fakew:
            g(f's_mul_i32 s9, s14, 3072\ns_mul_i32 s10, s{sJ}, 12288\ns_add_u32 s9, s9, s10')
            for q in range(3): g(f'v_lshl_add_u32 v{VW+q}, v0, 4, s9')
        s.dstamp(4,0); g('s_waitcnt lgkmcnt(0)'); s.dstamp(4,1)
        srd(g,rX,pU,2621440); srd(g,rWG,pWG,1966080); srd(g,rWU,pWU,1966080); srd(g,rWS,pWS,WS_END)
    def stage(s,st,x3=False):
        VX,VW=s.VX,s.VW; b=SLOT(st); t=('st',st)
        G_=[]; ad='sub' if st&1 else 'add'
        if s.o.nodma and st>=3: return G_
        x=lambda q:('vm',f'buffer_load_dwordx4 v{VX+q}, s[{rX}:{rX+3}], s{sXO} offen offset:{1024*q} lds',t)
        w=lambda r,q:('vm',f'buffer_load_dwordx4 v{VW+q}, s[{r}:{r+3}], s{sWO} offen offset:{1024*q}{[""," nt"," sc1"," sc0"," sc0 sc1"][s.o.wfl]} lds',t)
        G_+=[[('i',f's_add_u32 m0, s12, {b}\ns_nop 0'),x(0)],[x(1)],[x(2)],[x(3)]]
        G_+=[[('i',f's_add_u32 m0, s13, {b}\ns_add_u32 s{sXO}, s{sXO}, 128'),w(rWG,0)],[w(rWG,1)],[w(rWG,2)]]
        G_+=[[('i',f's_add_u32 m0, s13, {b+UPOFF}\ns_nop 0'),w(rWU,0)],[w(rWU,1)],[w(rWU,2),('i',f's_add_u32 s{sWO}, s{sWO}, 196608\ns_cmp_eq_u32 s{sWO}, 1966080\ns_cselect_b32 s{sWO}, 0, s{sWO}\ns_cselect_b32 s{sXO}, s{sKB0}, s{sXO}')]]
        return G_
    def flat(s,G_): return [it for grp in G_ for it in grp]
    def spin(s,load,cmp_,mask):
        g=s.g; a=s.L('SP'); b=s.L('SX')
        g('s_mov_b32 s15, 0'); g.lab(a); g(load); g('s_waitcnt vmcnt(0)'); g(cmp_)
        g(f's_add_u32 s15, s15, 1\ns_cmp_gt_u32 s15, {SPIN}\ns_cbranch_scc1 {b}\ns_cmp_eq_u64 vcc, {mask}\ns_cbranch_scc0 {a}'); g.lab(b)
    def sspin(s,loads,regs,want,pace=''):
        g=s.g; a=s.L('SP'); b=s.L('SX')
        g('s_mov_b32 s15, 0'); g.lab(a); g(loads); g('s_waitcnt lgkmcnt(0)')
        r=list(regs)
        while len(r)>2: g(f's_and_b64 s[{r[0]}:{r[1]}], s[{r[0]}:{r[1]}], s[{r[-2]}:{r[-1]}]'); r=r[:-2]
        g(f's_and_b32 s{r[0]}, s{r[0]}, s{r[1]}\ns_add_u32 s15, s15, 1\ns_cmp_gt_u32 s15, {SPIN}\ns_cbranch_scc1 {b}\ns_cmp_eq_u32 s{r[0]}, {want}')
        if pace: g(f's_cbranch_scc1 {b}'); g(pace); g(f's_branch {a}')
        else: g(f's_cbranch_scc0 {a}')
        g.lab(b)
    def lspin(s,va,vb,addr,n):
        g=s.g; a=s.L('LP'); b=s.L('LX')
        g(f'v_mov_b32 v{va}, {addr}\ns_mov_b32 s15, 0'); g.lab(a); g(f'ds_read_b32 v{vb}, v{va}\ns_waitcnt lgkmcnt(0)\nv_readfirstlane_b32 s11, v{vb}')
        g(f's_add_u32 s15, s15, 1\ns_cmp_gt_u32 s15, {SPIN*8}\ns_cbranch_scc1 {b}\ns_cmp_ge_u32 s11, {n}\ns_cbranch_scc0 {a}'); g.lab(b)
    def arrive_h(s,va,vb):
        g=s.g; l=s.L('HA')
        g(f's_mov_b64 exec, 1\nv_mov_b32 v{va}, {L_SY}\nv_mov_b32 v{vb}, 1\nds_add_rtn_u32 v{va}, v{va}, v{vb}\ns_waitcnt lgkmcnt(0)')
        g(f'v_readfirstlane_b32 s9, v{va}\ns_lshl_b32 s10, s{sI}, 7\ns_lshl_b32 s11, s{sJ}, 2\ns_cmp_eq_u32 s9, 4\ns_cbranch_scc0 {l}')
        g(f's_add_u32 s10, s10, s11\ns_add_u32 s10, s10, {FL_H}\nv_mov_b32 v{va}, s10')
        g(f'buffer_store_dword v{vb}, v{va}, s[{rWS}:{rWS+3}], 0 offen sc1'); g.lab(l); g('s_mov_b64 exec, -1')
    from gen_x import xpose, xloop, xpaths, kgen_chunk, kgen_expand, conv, x3path, cmul, warm
    from gen_c import cpath, gemm1, gemm2, final
    def build(s):
        g=s.g
        s.prologue(); s.xpaths(); s.xw=False; s.cpath()
        g.lab('END'); g('s_endpgm')
        bad=check(g.L)
        for b in bad: print('HAZARD',b,file=sys.stderr)
        ref=open(os.path.join(os.path.dirname(os.path.abspath(__file__)),'..','cdna_kernels',NAME+'.s.ref')).read()
        hdr=ref[:ref.index('; Override launch')]
        hdr+='; generated by gen/gen.py: one persistent launch, 256 workgroups x 8 waves (4 GEMM waves + 4 loader/SSM waves)\n'
        hdr+='; @launch grid=(256,1,1) block=(512,1,1) lds=163840\n'
        hdr+=f'.amdgcn_target "amdgcn-amd-amdhsa--gfx950"\n.text\n.globl {NAME}_kernel\n.p2align 8\n.type {NAME}_kernel,@function\n{NAME}_kernel:\n'
        ftr=ref[ref.index('.section .rodata'):]
        return hdr+g.text()+ftr, len(bad)
def make(**kw):
    o=Opt(); o.stamps=False; o.rot=1; o.g2map=0; o.pk=0; o.prio=1; o.prio2=1; o.prio3=3; o.mgap=8; o.w0=12; o.w8=12; o.w9=8; o.dfrac=75; o.warm=0; o.heavy=10; o.n1=1; o.na=6; o.swp=1; o.kloop=0; o.ilv=1; o.ub=4; o.wn=2; o.kpre=100; o.kiv=2; o.utv=2; o.twd=0; o.m16=0; o.touch=1; o.pre=2; o.mprio=0; o.ual=0; o.prioc=0; o.priox=1; o.diag=0; o.d0=0; o.cwarm=1; o.nokgen=0; o.nodma=0; o.clk=0; o.bal=1; o.jmap=1; o.xt=0; o.fakew=0; o.wfl=0; o.r2=3; o.fake=0; o.utw=1; o.tord=0; o.ufv=7; o.usp=2; o.tw0=1; o.utch=107; o.hold=0; o.sp=2; o.pace=1; o.hn=1; o.yst=3; o.yn=4; o.nsc=0; o.noconv=0; o.rt=1; o.ht=1; o.late=1; o.tlb=0
    for k,x in kw.items(): setattr(o,k,x)
    return Gen(o).build()
if __name__=='__main__':
    kw={}
    out=sys.argv[1]
    for a in sys.argv[2:]:
        k,x=a.split('='); kw[k]=int(x)
    t,nb=make(**kw)
    open(out,'w').write(t)
    print('wrote',out,len(t.split('\n')),'lines, hazards:',nb)
```

```python
from consts import *
ACC=16; FR=[112,132]; VXA=2; VWA=6; VH=7
def cpath(s):
    g=s.g; o=s.o; g.reset(); g.lab('CPATH')
    if o.prioc: g(f's_setprio {o.prioc}')
    s.loader_setup(0)
    def touch():
        g(f's_lshr_b32 s9, s{sWG}, 3\ns_and_b32 s9, s9, 7\ns_lshl_b32 s9, s9, 1\ns_lshr_b32 s10, s{sWAVE}, 1\ns_add_u32 s9, s9, s10\ns_mul_i32 s9, s9, {4*(10-o.np)}\ns_lshl_b32 s10, s76, 6\ns_add_u32 s9, s9, s10\ns_add_u32 s9, s9, {64*o.np}\ns_mul_i32 s10, s{sJ}, 192')
        g(f'v_min_u32 v11, {8*(10-o.np)-1}, v0\nv_lshrrev_b32 v10, 1, v11\nv_add_u32 v10, s9, v10\nv_subrev_u32 v12, 640, v10\nv_min_u32 v10, v10, v12\nv_mul_u32_u24 v10, 3072, v10')
        g(f'v_and_b32 v11, 1, v11\nv_lshl_add_u32 v10, v11, 7, v10\nv_add_u32 v251, s10, v10\ns_bitcmp0_b32 s{sWAVE}, 0\ns_cselect_b64 s[50:51], s[{pWG}:{pWG+1}], s[{pWU}:{pWU+1}]')
        g.vmem('global_load_dword v252, v251, s[50:51]')
    for st in range(o.np):
        if o.tord==st: touch()
        emit(g,s.flat(s.stage(st))); s.dstamp(4,2+st)
    if o.tord==o.np: touch()
    s.xpose(0); g.wait_vm(('st',0)); s.dstamp(4,5); s.xpose(1)
    if o.tord>o.np: touch()
    g(f's_lshr_b32 s12, s{sWAVE}, 1\ns_and_b32 s13, s{sWAVE}, 1')
    g('v_and_b32 v10, 31, v0\nv_lshlrev_b32 v10, 7, v10\ns_lshl_b32 s9, s12, 13\nv_add_u32 v10, s9, v10')
    g('v_bfe_u32 v11, v0, 1, 3\nv_lshrrev_b32 v12, 5, v0\nv_xor_b32 v11, v11, v12')
    g(f'v_lshl_add_u32 v{VXA}, v11, 4, v10')
    for ks in(1,2,3): g(f'v_xor_b32 v{VXA+ks}, {32*ks}, v{VXA}')
    for ks in range(4): g(f'v_add_u32 v{VXA+ks}, {SLOT(0)}, v{VXA+ks}')
    g(f'v_bfe_u32 v10, v0, 4, 1\nv_mul_u32_u24 v13, {UPOFF}, v10\nv_bfe_u32 v11, v0, 2, 2\nv_lshl_add_u32 v11, v12, 3, v11')
    g(f'v_mul_u32_u24 v11, 192, v11\nv_add_u32 v13, v13, v11\nv_and_b32 v11, 3, v0\nv_lshl_add_u32 v13, v11, 3, v13')
    g(f's_mul_i32 s9, s13, 96\ns_add_u32 s9, s9, {WOFF+SLOT(0)}\nv_add_u32 v{VWA}, s9, v13')
    g(f'v_and_b32 v11, 15, v0\nv_lshlrev_b32 v11, 4, v11\nv_lshl_add_u32 v11, v12, 8, v11\nv_lshl_add_u32 v{VH}, v10, 10, v11')
    srd(g,rOUT,pOUT,2621440)
    s.dstamp(4,6)
    for r in range(96): g(f'v_mov_b32 v{ACC+r}, 0')
    s.gemm1(); s.gemm2(); s.final()
def touch(g): g(f'global_load_dword v252, v251, s[50:51]\nglobal_load_dword v253, v250, s[{pU}:{pU+1}]')
def gemm1(s):
    g=s.g; o=s.o
    def reads(ks,F):
        x=lambda tj:(f'ds_read_b128 {v(F+12+4*tj,4)}, v{VXA+ks} offset:{4096*tj}',('x',F,tj))
        w=lambda fi,h:(f'ds_read_b64_tr_b16 {v(F+4*fi+2*h,2)}, v{VWA} offset:{ks*3072+h*768+fi*32}',('w',F,fi))
        return [x(0),w(0,0),w(0,1),x(1),w(1,0),w(1,1),w(2,0),w(2,1)]
    def mf(F,fi,tj):
        g.wait_lg(('w',F,fi)); g.wait_lg(('x',F,tj)); a=ACC+16*(3*tj+fi)
        g(f'v_mfma_f32_32x32x16_bf16 {v(a,16)}, {v(F+4*fi,4)}, {v(F+12+4*tj,4)}, {v(a,16)}')
    g(f's_mov_b32 s80, 0\ns_mov_b32 s81, 1\ns_mov_b32 s83, {-2*STAGE}')
    g('s_barrier'); s.stamp(1)
    for t,tag in reads(0,FR[0]): g.lds(t,tag)
    st0=list(g.lg)
    g.lab('G1')
    g(f's_cmp_eq_u32 s81, 2\ns_cselect_b32 s82, s83, {STAGE}\ns_cselect_b32 s81, -1, s81\ns_add_u32 s81, s81, 1')
    order=[(0,0),(0,1),(1,0),(1,1),(2,0),(2,1)]
    for ks in range(4):
        F=FR[ks&1]; R=reads((ks+1)&3,FR[(ks+1)&1])
        if ks==3:
            g.wait_vm(('st',1)); g('s_cmp_eq_u32 s80, 0\ns_cbranch_scc1 G1W'); g.wait_vm(('st',2))
            if o.utw>1: g(f's_cmp_lt_u32 s80, {o.utw}\ns_cbranch_scc1 G1W')
            g.wait_vm('uts')
            if o.prioe: g(f's_cmp_lg_u32 s80, 9\ns_cbranch_scc1 G1W\ns_setprio {o.prioe}')
            g.lab('G1W'); g.wait_lg()
            if o.diag and o.diag<4: g(f's_sub_u32 s9, s80, {o.d0}\ns_lshl_b32 s9, s9, 1\ns_sub_u32 s10, s9, 2\ns_cmp_lt_u32 s10, 14\ns_cselect_b32 m0, s9, 16\ns_nop 0\ns_movreld_b32 s84, s100\n'+('s_memtime' if o.clk else 's_memrealtime')+' s[100:101]')
        for k,(fi,tj) in enumerate(order):
            mf(F,fi,tj)
            if ks==3 and k==0: g('s_barrier')
            if k<4:
                for t,tag in R[2*k:2*k+2]: g.lds(t,tag)
            if k==4:
                if ks==0: g(f'v_add_u32 v{VXA}, s82, v{VXA}\nv_add_u32 v{VXA+1}, s82, v{VXA+1}')
                if ks==1: g(f'v_add_u32 v{VXA+2}, s82, v{VXA+2}')
                if ks==2: g(f'v_add_u32 v{VXA+3}, s82, v{VXA+3}\nv_add_u32 v{VWA}, s82, v{VWA}')
                if ks==3: g('s_add_u32 s80, s80, 1\ns_cmp_lt_u32 s80, 10')
    assert g.lg==st0
    g('s_cbranch_scc1 G1')
    s.stamp(2); s.dstamp(6,0)
    g(f's_lshl_b32 s9, s{sI}, 1\ns_add_u32 s9, s9, s12\ns_mul_i32 s9, s9, 196608')
    g(f's_mul_i32 s10, s{sJ}, 6\ns_mul_i32 s11, s13, 3\ns_add_u32 s10, s10, s11')
    for fi in range(3):
        g(f's_add_u32 s11, s10, {fi}\ns_lshr_b32 s15, s11, 1\ns_lshl_b32 s15, s15, 12\ns_and_b32 s11, s11, 1\ns_lshl_b32 s11, s11, 9\ns_add_u32 s11, s11, s15\ns_add_u32 s{80+fi}, s11, s9')
    for fi,tj in order:
        a=ACC+16*(3*tj+fi)
        for r in range(8): g(f'v_mul_f32 v{a+r}, v{a+r}, v{a+r+8}')
        for r in range(4): g(f'v_cvt_pk_bf16_f32 v{a+r}, v{a+2*r}, v{a+2*r+1}')
        g.vmem(f'buffer_store_dwordx4 {v(a,4)}, v{VH}, s[{rWS}:{rWS+3}], s{80+fi} offen offset:{2048*tj} sc1','hst')
    s.dstamp(6,1); g.wait_lg()
VL=1; VL2=2; VAR=3; VHA=4; A2=8; AF0=88
def gemm2(s):
    g=s.g; o=s.o; NA=o.na; HB=AF0+20*NA; NH=(256-HB)//16; AF=lambda st:AF0+20*(st%NA); HF=lambda st,tau:HB+16*(st%NH)+4*tau
    g(f's_mul_i32 s12, s{sWAVE}, 10240\ns_lshl_b32 s13, s{sDJ}, 2\ns_add_u32 s13, s13, s{sWAVE}\ns_mul_i32 s13, s13, 61440\ns_add_u32 s77, s13, {WS_WP}')
    g(f'v_lshlrev_b32 v{VL}, 4, v0\nv_add_u32 v{VL2}, 4096, v{VL}\nv_add_u32 v{VAR}, s12, v{VL}')
    if o.rt: g(f's_and_b32 s76, s{sTI}, 3\ns_mul_i32 s76, s76, 3')
    else: g(f's_mul_i32 s76, s{sDJ}, {o.r2}\ns_lshr_b32 s76, s76, 1\ns_cmp_ge_u32 s76, 12\ns_cselect_b32 s9, 12, 0\ns_sub_u32 s76, s76, s9')
    g(f's_add_u32 s78, s77, 61440\ns_mul_i32 s9, s76, 5120\ns_add_u32 s13, s77, s9')
    W1='' if o.nsc&1 else ' sc1'; H1='' if o.nsc&2 else ' sc1'
    nxt=('i','s_add_u32 s13, s13, 5120\ns_cmp_eq_u32 s13, s78\ns_cselect_b32 s13, s77, s13')
    def wd(st):
        b=RS((st-NA)&3); t=('wd',st); d=lambda q:('vm',f'buffer_load_dwordx4 v{VL2 if q==4 else VL}, s[{rWS}:{rWS+3}], s13 offen offset:{1024*(q&3)}{W1} lds',t)
        return [[('i',f's_add_u32 m0, s12, {b}\ns_nop 0'),d(0)],[d(1)],[d(2)],[d(3),('i',f's_add_u32 m0, s12, {b+4096}')],[('i','s_nop 0'),d(4),nxt]]
    def wr(st):
        d=lambda q:('vm',f'buffer_load_dwordx4 {v(AF(st)+4*q,4)}, v{VL2 if q==4 else VL}, s[{rWS}:{rWS+3}], s13 offen offset:{1024*(q&3)}{W1}',('wr',st))
        return [[d(0)],[d(1)],[d(2)],[d(3)],[d(4),nxt]]
    def rd(st):
        return [[('lds',f'ds_read_b128 {v(AF(st)+4*n,4)}, v{VAR} offset:{RS((st-NA)&3)+1024*n}',('a',st))] for n in range(5)]
    pf=lambda st:wr(st) if st<NA else wd(st)
    if o.pkv>=0 and o.n1: s.lspin(8,9,L_SY+12,1)
    for st in range(o.n1): emit(g,s.flat(pf(st)))
    g(f's_mul_i32 s14, s{sTI}, 196608\ns_mul_i32 s9, s{sWAVE}, 49152\ns_add_u32 s14, s14, s9')
    g(f's_add_u32 s81, s14, 49152\ns_lshl_b32 s9, s76, 12\ns_add_u32 s80, s14, s9')
    for tau in range(4): g(f's_add_u32 s9, s{sWAVE}, {tau}\ns_and_b32 s9, s9, 3\ns_lshl_b32 s9, s9, 10\nv_add_u32 v{VHA+tau}, s9, v{VL}')
    g.wait_vm('hst'); s.arrive_h(8,9); s.stamp(3); s.dstamp(6,2)
    if o.prioe: g(f's_setprio {o.priop}')
    if o.pkv>=0 and not o.n1: s.lspin(8,9,L_SY+12,1)
    if o.hold:
        g(f'v_mov_b32 v8, {L_SY}\ns_mov_b32 s15, 0'); g.lab('AW'); g('ds_read_b32 v9, v8\ns_waitcnt lgkmcnt(0)\nv_readfirstlane_b32 s9, v9')
        g(f's_add_u32 s15, s15, 1\ns_cmp_gt_u32 s15, {SPIN*8}\ns_cbranch_scc1 AX\ns_cmp_ge_u32 s9, 5\ns_cbranch_scc0 AW'); g.lab('AX')
    for st in range(o.n1,NA+4):
        emit(g,s.flat(pf(st)))
        if st==NA-1: s.dstamp(6,3)
    s.dstamp(5,0); s.dstamp(6,4)
    if o.sp==3:
        g(f'v_mov_b32 v0, {L_SY+4}\ns_mov_b64 exec, 1\nds_inc_u32 v0, v0\ns_mov_b64 exec, -1\ns_lshl_b32 s9, s{sWAVE}, 2\ns_add_u32 s9, s9, {L_SY+16}'); s.lspin(8,9,'s9',1)
    elif o.sp:
        g(f's_lshr_b32 s9, s{sTI}, 1\ns_lshl_b32 s9, s9, 3\ns_add_u32 s9, s9, s{sWAVE}\ns_lshl_b32 s9, s9, 4\ns_add_u32 s9, s9, {FL_H}')
        s.sspin(f's_buffer_load_dwordx4 s[16:19], s[{rWS}:{rWS+3}], s9 glc',range(16,20),1,'s_waitcnt vmcnt(0)\n'*(o.pace>0)+f'ds_read_b32 v9, v{VAR}\ns_waitcnt lgkmcnt(0)\n'*max(o.pace-1,0))
        if o.sp==2: g(f'v_mov_b32 v0, {L_SY+4}\nv_mov_b32 v9, 1\ns_mov_b64 exec, 1\nds_add_u32 v0, v9\ns_mov_b64 exec, -1')
    else:
        g(f's_lshl_b32 s10, s{sWAVE}, 1\ns_add_u32 s10, s10, {L_SY+8}\nv_mov_b32 v8, s10\ns_mov_b32 s15, 0')
        g.lab('HW'); g('ds_read_u16 v9, v8\ns_waitcnt lgkmcnt(0)\nv_readfirstlane_b32 s9, v9')
        g(f's_add_u32 s15, s15, 1\ns_cmp_gt_u32 s15, {SPIN*8}\ns_cbranch_scc1 HX\ns_cmp_eq_u32 s9, 0xffff\ns_cbranch_scc0 HW'); g.lab('HX')
    if o.prio: g(f's_setprio {o.prio2}')
    s.stamp(4); s.dstamp(5,1); s.dstamp(6,5)
    def hl(st,tau):
        return [('vm',f'buffer_load_dwordx4 {v(HF(st,tau),4)}, v{VHA+tau}, s[{rWS}:{rWS+3}], s80 offen{H1}',('h',st,tau))]+([('i','s_add_u32 s80, s80, 4096\ns_cmp_eq_u32 s80, s81\ns_cselect_b32 s80, s14, s80')] if tau==3 else [])
    for st in range(NH):
        for tau in range(4): emit(g,hl(st,tau))
    s.dstamp(5,2)
    for st in range(12):
        main=[]
        for tau in range(4):
            for n in range(5):
                a=A2+20*tau+4*n; c=v(a,4) if st else '0'
                it=[]
                if n==0: it.append(('wvm',('h',st,tau)))
                it.append(('i',f'v_mfma_f32_16x16x32_bf16 {v(a,4)}, {v(AF(st)+4*n,4)}, {v(HF(st,tau),4)}, {c}'))
                if n==4 and st+NH<12: it+=hl(st+NH,tau)
                main.append(it)
        side=[]; k=st-1+NA
        if o.late:
            if st>=1 and k<12:
                if k<NA+4: R=rd(k); R[0]=[('wvm',('wd',k))]+R[0]; side+=R
                else: side+=wr(k)
        else:
            if st>=2 and k+3<12:
                W=wd(k+3); W[0]=[('wlg',('a',k-1))]+W[0]; side+=W
            if st>=1 and k<12:
                R=rd(k); R[0]=[('wvm',('wd',k))]+R[0]; side+=R
        side=[x for grp in side for x in(grp,[])]
        g.wait_lg(('a',st)); g.wait_vm(('wr',st))
        for k,it in enumerate(main):
            emit(g,it)
            if k<len(side): emit(g,side[k])
        if o.sp>=2 and st==o.yst: g('s_mov_b64 exec, 1'); g.lds('ds_inc_u32 v0, v0 offset:4'); g('s_mov_b64 exec, -1')
        if st in(0,3,7): s.dstamp(5,3+(st+1)//4)
    if o.sp>=2: g(f'v_lshrrev_b32 v0, 4, v{VL}')
    s.stamp(5); s.dstamp(5,6); s.dstamp(6,6)
Y=AF0; GG=AF0+10; T_=AF0+12; O_=AF0+20; YA=AF0+32; P_=192
def final(s):
    g=s.g; o=s.o
    g(f'v_add_u32 v128, s12, v{VL}')
    for tau in range(1,4):
        g(f's_sub_u32 s9, s{sWAVE}, {tau}\ns_and_b32 s9, s9, 3\ns_mul_i32 s10, s9, 10240\nv_add_u32 v{1+tau}, s10, v{VL}')
        if tau==3: g('s_nop 0')
        for n in range(5): g.lds(f'ds_write_b128 v128, {v(A2+20*tau+4*n,4)} offset:{RS(tau-1)+n*1024}')
    g(f'v_lshrrev_b32 v129, 4, v0\nv_mul_u32_u24 v129, 20, v129\nv_bfe_u32 v130, v0, 2, 2\nv_add_u32 v130, v129, v130\nv_and_b32 v131, 3, v0')
    g(f's_lshl_b32 s9, s{sWAVE}, 5\ns_add_u32 s10, s9, {L_KS+4608}\nv_lshl_add_u32 v131, v131, 3, s10\nv_lshl_add_u32 v131, v130, 7, v131\ns_movk_i32 s10, 4608')
    for n in range(5): g(f'v_add_u32 v5, {4*n}, v130\nv_lshrrev_b32 v5, 5, v5\nv_mad_u32_u24 v{YA+n}, v5, s10, v131')
    g(f'v_and_b32 v131, 15, v0\ns_lshl_b32 s9, s9, 1\ns_add_u32 s10, s9, {L_G}\nv_lshl_add_u32 v6, v131, 2, s10')
    g(f'v_mul_u32_u24 v131, 1280, v131\nv_lshl_add_u32 v7, v129, 1, v131')
    g(f's_lshl_b32 s9, s{sTI}, 2\ns_add_u32 s9, s9, s{sWAVE}\ns_mul_i32 s9, s9, 20480\ns_mul_i32 s10, s{sDJ}, 160\ns_add_u32 s11, s9, s10')
    g.wait_lg(); g('s_barrier'); s.stamp(6)
    g.lds(f'ds_read_b32 v{GG}, v6','g')
    for n in range(5):
        g.lds(f'ds_read_b64_tr_b16 {v(Y+2*n,2)}, v{YA+n} offset:{512*n}',('y',n))
        for tau in range(1,4): g.lds(f'ds_read_b128 {v(P_+12*n+4*(tau-1),4)}, v{1+tau} offset:{RS(tau-1)+n*1024}',('p',n))
        if n>=2: fin(g,n-2)
    fin(g,3); fin(g,4)
    s.stamp(7); s.dump_stamps((0,[(k,1+k) for k in range(8)])); g('s_endpgm')
def fin(g,n):
    g.wait_lg(('p',n)); a=A2+4*n; O=O_; T=T_; p=P_+12*n
    for e in range(4): g(f'v_add_f32 v{a+e}, v{a+e}, v{p+e}\nv_add_f32 v{p+4+e}, v{p+4+e}, v{p+8+e}')
    for e in range(4):
        g(f'v_lshlrev_b32 v{T+e}, 16, v{Y+2*n+e//2}' if e%2==0 else f'v_and_b32 v{T+e}, 0xffff0000, v{Y+2*n+e//2}')
        g(f'v_add_f32 v{a+e}, v{a+e}, v{p+4+e}')
    for e in range(4): g(f'v_sub_f32 v{T+e}, v{T+e}, v{a+e}')
    for e in range(4): g(f'v_fmac_f32 v{a+e}, v{GG}, v{T+e}')
    g(f'v_cvt_pk_bf16_f32 v{O+2*n}, v{a}, v{a+1}\nv_cvt_pk_bf16_f32 v{O+2*n+1}, v{a+2}, v{a+3}')
    if n in(1,3): g.vmem(f'buffer_store_dwordx4 {v(O+2*n-2,4)}, v7, s[{rOUT}:{rOUT+3}], s11 offen offset:{8*(n-1)}')
    if n==4: g.vmem(f'buffer_store_dwordx2 {v(O+8,2)}, v7, s[{rOUT}:{rOUT+3}], s11 offen offset:32')
```

```python
from consts import *
I=lambda t:('i',t)
SA=10; FA=18; RAW=20; LDT,DSK=32,33; DT,DTL,DTP=34,35,36
B_,C_,ZR,ZI,CC=38,40,42,43,44; E1,E8,E256,E512,E1024=46,50,54,58,62; TM=66; CVT=70; P0=80
BF,AFR,KA=128,160,192
sKS,sUB,sT0,sT1=34,35,50,51
def cmul(s,d,a,b):
    if s.o.pk:
        return [I(f'v_pk_mul_f32 {v(d,2)}, {v(a,2)}, {v(b,2)} op_sel:[0,0] op_sel_hi:[0,1]'),
                I(f'v_pk_fma_f32 {v(d,2)}, {v(a,2)}, {v(b,2)}, {v(d,2)} op_sel:[1,1,0] op_sel_hi:[1,0,1] neg_lo:[0,1,0]')]
    return [I(f'v_mul_f32 v{d}, v{a}, v{b}'),I(f'v_mul_f32 v{d+1}, v{a}, v{b+1}'),
            I(f'v_fma_f32 v{d}, -v{a+1}, v{b+1}, v{d}'),I(f'v_fmac_f32 v{d+1}, v{a+1}, v{b}')]
def Ex(dst,x,TM,ZR):
    L=[]
    if x!=1:
        L+=[I(f'v_mul_f32 v{TM}, {hex(fb(x))}, v{ZR}'),I(f'v_mul_f32 v{TM+1}, {hex(fb(x))}, v{ZR+1}'),I(f'v_fract_f32 v{TM+1}, v{TM+1}')]; m=TM
    else: L+=[I(f'v_fract_f32 v{TM+1}, v{ZR+1}')]; m=ZR
    L+=[I(f'v_exp_f32 v{TM}, v{m}'),I(f'v_cos_f32 v{dst}, v{TM+1}'),I(f'v_sin_f32 v{dst+1}, v{TM+1}'),
        I(f'v_mul_f32 v{dst}, v{dst}, v{TM}'),I(f'v_mul_f32 v{dst+1}, v{dst+1}, v{TM}')]
    return L
def fb(x):
    import struct; return struct.unpack('<I',struct.pack('<f',x))[0]
class Rows:
    def __init__(s,L): s.L=L; s.pend={}
    def put(s,row,r):
        k=row>>2
        if k in s.pend:
            r0,row0=s.pend.pop(k)
            s.L.append(('lds',f'ds_write2_b32 v{SA+k}, v{r0}, v{r} offset0:{68*(row0&3)} offset1:{68*(row&3)}'))
        else: s.pend[k]=(r,row)
    def flush(s):
        for k,(r,row) in s.pend.items(): s.L.append(('lds',f'ds_write_b32 v{SA+k}, v{r} offset:{272*(row&3)}'))
        s.pend={}
CH=50; HH=54; ONE=65; KSC=37; EA,EB=68,70; RW=80
def unp(dst,a,ch): return I([f'v_lshlrev_b32 v{dst}, 16, v{RAW+a}',f'v_and_b32 v{dst}, 0xffff0000, v{RAW+a}',f'v_lshlrev_b32 v{dst}, 16, v{RAW+6+a}'][ch])
def hmul(d,a,b,conj):
    n1,n2=(' neg_hi:[0,1]','') if conj else ('',' neg_lo:[0,1,0]')
    return [I(f'v_pk_mul_f16 v{d}, v{a}, v{b} op_sel:[0,0] op_sel_hi:[0,1]{n1}'),I(f'v_pk_fma_f16 v{d}, v{a}, v{b}, v{d} op_sel:[1,1,0] op_sel_hi:[1,0,1]{n2}')]
def kgen_pre(s):
    L=[('wvm','par'),I(f'v_lshlrev_b32 v{LDT}, 16, v{LDT}'),I(f'v_mul_f32 v{LDT}, {hex(fb(1.4426950408889634))}, v{LDT}'),I(f'v_exp_f32 v{LDT}, v{LDT}'),I(f'v_mov_b32 v{ONE}, 0x3c00'),
       I(f'v_cvt_pk_bf16_f32 v{DT}, v{LDT}, v{LDT}'),I(f'v_lshlrev_b32 v{DT}, 16, v{DT}'),
       I(f'v_mul_f32 v{DTL}, {hex(fb(1.4426950408889634))}, v{DT}'),I(f'v_mul_f32 v{DTP}, {hex(fb(0.15915494309189535))}, v{DT}')]
    for ch in range(3):
        L+=[unp(d,2+a,ch) for a,d in enumerate([B_,B_+1,C_,C_+1])]+s.cmul(CC+2*ch,C_,B_)
        L.append(I(f'v_max3_f32 v{TM}, |v{CC+2*ch}|, |v{CC+2*ch+1}|, '+(f'v{TM}' if ch else '0')))
    t=''
    for c in['quad_perm:[1,0,3,2]','quad_perm:[2,3,0,1]','row_half_mirror','row_mirror']: t+=f's_nop 1\nv_max_f32_dpp v{TM}, v{TM}, v{TM} {c} row_mask:0xf bank_mask:0xf\n'
    t+=f's_nop 0\nv_readlane_b32 s9, v{TM}, 0\nv_readlane_b32 s10, v{TM}, 16\nv_readlane_b32 s11, v{TM}, 32\nv_readlane_b32 s15, v{TM}, 48\n'
    t+='s_max_u32 s9, s9, s10\ns_max_u32 s11, s11, s15\ns_max_u32 s9, s9, s11\ns_lshr_b32 s9, s9, 23\ns_max_u32 s9, s9, 11\ns_min_u32 s9, s9, 253\n'
    t+=f's_sub_u32 s10, 264, s9\ns_lshl_b32 s10, s10, 23\ns_sub_u32 s9, s9, 10\ns_lshl_b32 s9, s9, 23\nv_mul_f32 v{KSC}, s9, v{DT}\n'
    for k in range(6): t+=f'v_mul_f32 v{CC+k}, s10, v{CC+k}\n'
    L.append(I(t))
    for ch in range(3): L+=[unp(ZS[ch],0,ch),unp(ZS[ch]+1,1,ch),I(f'v_mul_f32 v{ZS[ch]}, v{ZS[ch]}, v{DTL}'),I(f'v_mul_f32 v{ZS[ch]+1}, v{ZS[ch]+1}, v{DTP}')]
    for ch in range(3): L.append(I(f'v_cvt_pk_f16_f32 v{CH+ch}, v{CC+2*ch}, -v{CC+2*ch+1}'))
    return L
ZS=[42,112,114]
def units(L,R,U,ilv):
    i=0
    while i<len(U):
        u=U[i]
        if u[0] is None: R.put(u[4],u[1]); i+=1; continue
        grp=[u]
        while ilv and len(grp)<=ilv and i+len(grp)<len(U):
            n=U[i+len(grp)]
            if n[0] is None or n[1] in [x[0] for x in grp]: break
            grp.append(n)
        ms=[hmul(*x[:4]) for x in grp]
        L+=[m[0] for m in ms]+[m[1] for m in ms]
        for x in grp:
            if x[4] is not None: R.put(x[4],x[0])
        i+=len(grp)
def kgen_chunk(s,ch):
    h=lambda x:HH+x.bit_length()-1; C2=[]
    for x0,n,a,b,t in[(1,4,68,70,66),(32,5,74,76,72)]:
        c=Ex(a,x0,t,ZS[ch]); c.append(I(f'v_cvt_pk_f16_f32 v{h(x0)}, v{a}, v{a+1}'))
        for k in range(1,n+1):
            c+=[I(f'v_mul_f32 v{t}, v{a+1}, v{a+1}'),I(f'v_add_f32 v{t+1}, v{a}, v{a}'),I(f'v_fma_f32 v{b}, v{a}, v{a}, -v{t}'),I(f'v_mul_f32 v{b+1}, v{t+1}, v{a+1}'),
                I(f'v_cvt_pk_f16_f32 v{h(x0<<k)}, v{b}, v{b+1}')]; a,b=b,a
        C2.append(c)
    H=merge(C2[1],[[x] for x in C2[0]]) if s.o.ilv else C2[0]+C2[1]
    R=Rows(H); rb={0:ONE}; U=[(None,ONE,0,0,0)]
    for j in range(1,32):
        hb=1<<(j.bit_length()-1)
        if j==hb: rb[j]=h(8*j); U.append((None,rb[j],0,0,j))
        else: rb[j]=RW+j; U.append((RW+j,rb[j-hb],h(8*hb),0,j))
    units(H,R,U,s.o.ilv)
    T=[]
    for k in range(8): T.append(('lds',f'ds_read_b128 {v(BF+4*k,4)}, v{FA} offset:{32*k}',('b',k)))
    R=Rows(T); row=lambda half,r:8*(r//4)+4*half+r%4
    P={0:CH+ch}; nx=[RW]; U=[(None,P[0],0,0,row(0,0))]
    def mk(x,y,r):
        d=nx[0]; nx[0]+=1; U.append((d,P[x-y],h(y),1,r)); P[x]=d
    for hi in range(1,8): mk(hi,1<<(hi.bit_length()-1),row(0,hi))
    mk(8,8,None)
    for n,k in enumerate([0,2,4,6,8]): mk(256+k,256,row(0,8+n))
    for n,k in enumerate([0,4,8]): mk(512+k,512,row(0,13+n))
    for n,k in enumerate([0,4,8]): mk(768+k,512,row(1,n))
    for m in range(4):
        for n,k in enumerate([0,8]): mk(1024+256*m+k,1024,row(1,3+2*m+n))
    units(T,R,U,s.o.ilv); R.flush()
    for k in range(8): T.append(('lds',f'ds_read_b128 {v(AFR+4*k,4)}, v{FA} offset:{32*k}',('a',k)))
    M=[]
    for k in range(8):
        c=v(KA,16) if (ch or k or s.o.kloop) else '0'
        t=f'v_mfma_f32_32x32x16_f16 {v(KA,16)}, {v(AFR+4*k,4)}, {v(BF+4*k,4)}, {c}'
        if s.o.mprio: t=f's_setprio 3\n{t}\ns_setprio {s.o.priox}'
        M.append([('wlg',('a',k)),I(t)])
    return H,T,M
def kgen_expand(s):
    L=[]; VE,VZ,t=10,11,12; X=BF; cv=lambda d,a,b:L.append(I(f'v_cvt_pk_bf16_f32 v{d}, v{a}, v{b}'))
    L+=[I(f'v_and_b32 v{t}, 31, v0'),I(f'v_lshlrev_b32 v{t}, 4, v{t}'),I(f's_add_u32 s9, s{sKS}, 496'),I(f'v_sub_u32 v{VE}, s9, v{t}'),
        I(f'v_add_u32 v{VZ}, s{sKS}, v{t}'),I(f'v_and_b32 v{t}, 1, v0'),I(f'v_cmp_eq_u32 vcc, 1, v{t}'),I(f'v_lshlrev_b32 v{DSK}, 16, v{DSK}')]
    for k in range(4): L.append(I(f'v_mov_b32 v{X+k}, 0'))
    L.append(I('s_nop 0'))
    for k in range(16): L.append(I(f'v_mul_f32 v{KA+k}, v{KA+k}, v{KSC}'))
    L.append(I(f's_mov_b64 exec, 1\nv_add_f32 v{KA}, v{KA}, v{DSK}\ns_mov_b32 exec_lo, -1'))
    n=[1]
    def chunk(e,base):
        x=X+4*n[0]; n[0]+=1
        for k in range(4): cv(x+k,e[7-2*k],e[6-2*k])
        L.append(('lds',f'ds_write_b128 v{VE}, {v(x,4)} offset:{2*(1792-base)}'))
    a=lambda r:KA+r
    L.append(('lds',f'ds_write_b128 v{VZ}, {v(X,4)} offset:4096'))
    chunk([a(r) for r in range(8)],0)
    chunk([a(8+k) for k in[0,0,1,2,2,2,3,4]],256)
    chunk([a(13+k) for k in[0,0,0,1,1,1,2,2]],512)
    L+=[I('s_mov_b64 exec, -1'),('cut',),I('s_mov_b32 exec_lo, 0')]
    chunk([a(k) for k in[0,0,0,1,1,1,2,2]],768)
    for m in range(4):
        z0,z8=a(3+2*m),a(4+2*m); L.append(I(f'v_cndmask_b32 v{t}, v{z0}, v{z8}, vcc'))
        chunk([z0,z0,z0,z0,t,z8,z8,z8],1024+256*m)
    L.append(I('s_mov_b64 exec, -1'))
    return L
UA,UO,UD=244,248,224
def xpose(s,part):
    g=s.g
    if part==0:
        g(f's_lshl_b32 s10, s14, 12\ns_add_u32 s10, s10, {SLOT(0)}')
        g('v_lshrrev_b32 v240, 4, v0\nv_bfe_u32 v241, v0, 2, 2\nv_lshl_add_u32 v241, v240, 3, v241\nv_lshlrev_b32 v241, 7, v241\nv_bfe_u32 v242, v0, 1, 1\nv_bfe_u32 v243, v0, 3, 1\nv_xor_b32 v242, v242, v243')
        g('v_bfe_u32 v243, v0, 4, 1\nv_lshl_add_u32 v242, v243, 2, v242\nv_lshl_add_u32 v241, v242, 4, v241\nv_and_b32 v242, 1, v0\nv_lshl_add_u32 v241, v242, 3, v241')
        for m in range(4): g(f'v_xor_b32 v242, {32*m}, v241\nv_add_u32 v{UA+m}, s10, v242')
        g(f'v_and_b32 v242, 15, v0\nv_mul_u32_u24 v242, {ROWS}, v242\nv_lshl_add_u32 v242, v240, 4, v242\ns_cmp_lt_u32 s{sJ}, 10\ns_cselect_b32 s9, 0, 0x40000000\nv_add_u32 v{UO}, s9, v242')
        g(f's_mul_i32 s9, s76, {64*ROWS}\ns_lshl_b32 s10, s{sI}, 8\ns_add_u32 s9, s9, s10\ns_lshl_b32 s10, s14, 6\ns_add_u32 s9, s9, s10')
        return
    for db in range(4):
        for h in range(2): g.lds(f'ds_read_b64_tr_b16 {v(UD+4*db+2*h,2)}, v{UA+(db^h)} offset:{512*h}',('ut',db))
    for db in range(4):
        g(f's_add_u32 s10, s9, {WS_UT+16*db*ROWS}'); g.wait_lg(('ut',db))
        g.vmem(f'buffer_store_dwordx4 {v(UD+4*db,4)}, v{UO}, s[{rWS}:{rWS+3}], s10 offen sc1','uts')
def pack(s,part,x3):
    g=s.g; PD,PA,PF=200,206,224; base=L_TMP if x3 else L_KS+2*8704
    if part==0:
        g(f's_lshr_b32 s9, s{sP}, 1\ns_mul_i32 s77, s9, 3\n'+(f's_and_b32 s9, s{sP}, 1\ns_add_u32 s77, s77, s9' if x3 else 's_add_u32 s77, s77, 2'))
        g(f's_lshr_b32 s10, s{sP}, 5\ns_mul_i32 s9, s10, 48\ns_sub_u32 s9, s77, s9\ns_mul_i32 s9, s9, 40960\ns_mul_i32 s10, s10, 160\ns_add_u32 s78, s9, s10\nv_lshlrev_b32 v1, 4, v0')
        for q in range(5):
            g(f'v_add_u32 v9, {64*q}, v0\nv_mul_u32_u24 v9, 6554, v9\nv_lshrrev_b32 v9, 16, v9\nv_mul_u32_u24 v9, 1120, v9\nv_add_u32 v{PD+q}, v9, v1')
        g(f's_mov_b32 m0, {base}\nv_add_u32 v{PD+4}, 4096, v{PD+4}\ns_waitcnt lgkmcnt(0)'); srd(g,rWD,pWD,1966080)
        for q in range(5):
            if q==4: g(f's_mov_b32 m0, {base+4096}\ns_nop 0')
            g.vmem(f'buffer_load_dwordx4 v{PD+q}, s[{rWD}:{rWD+3}], s78 offen offset:{1024*(q&3)} lds','blk')
        g(f's_mul_i32 s78, s77, 5120\ns_add_u32 s78, s78, {WS_WP}')
        return
    g('v_bfe_u32 v200, v0, 2, 2\nv_bfe_u32 v201, v0, 4, 1\nv_lshl_add_u32 v200, v201, 2, v200\nv_lshrrev_b32 v201, 5, v0\nv_lshl_add_u32 v200, v201, 4, v200')
    g(f'v_mul_u32_u24 v200, 160, v200\nv_and_b32 v201, 3, v0\nv_mul_u32_u24 v201, 40, v201\ns_mov_b32 s9, {base}\nv_add3_u32 v{PA}, v200, v201, s9\nv_add_u32 v201, 4096, v1')
    g.wait_vm('blk')
    for n in range(5):
        for h in range(2): g.lds(f'ds_read_b64_tr_b16 {v(PF+4*n+2*h,2)}, v{PA} offset:{8*n+1280*h}',('pf',n))
    for n in range(5):
        g.wait_lg(('pf',n)); g.vmem(f'buffer_store_dwordx4 {v(PF+4*n,4)}, v{201 if n==4 else 1}, s[{rWS}:{rWS+3}], s78 offen offset:{1024*(n&3)} sc1','pk')
def xloop(s,role,pre=None,post=None,extra={}):
    g=s.g; o=s.o
    if role!='3' and o.twd==2:
        g(f's_mul_i32 s9, s{sWG}, 3\ns_add_u32 s9, s9, s14\ns_mul_i32 s9, s9, 2560\ns_add_u32 s72, s{pWD}, s9\ns_addc_u32 s73, s{pWD+1}, 0')
    if role!='3' and o.twd==3:
        g(f's_lshr_b32 s9, s{sWG}, 3\ns_mul_i32 s9, s9, 3\ns_add_u32 s9, s9, s14\ns_mul_i32 s9, s9, 20480\ns_lshr_b32 s10, s{sDJ}, 2\ns_mul_i32 s10, s10, 640\ns_add_u32 s9, s9, s10')
        g(f's_add_u32 s64, s{pWD}, s9\ns_addc_u32 s65, s{pWD+1}, 0\ns_and_b32 s66, s{sWG}, 6\ns_mul_i32 s66, s66, 2560')
    for iv in range(9):
        if pre: pre(iv)
        st=s.stage(iv+2,role=='3') if o.np-2<=iv<=7 else []
        ex=extra.get(iv,[])
        emit(g,merge(ex,st,0,len(ex)*o.dfrac//100) if ex else s.flat(st))
        if role!='3' and o.twd==2 and 0<=iv-o.tw0<o.twn:
            for k in range(40*(iv-o.tw0)//o.twn,40*(iv+1-o.tw0)//o.twn): g(f's_load_dword s74, s[72:73], {64*k}')
        if role!='K' and iv==o.pkv: s.pack(0,role=='3')
        if role!='K' and iv==o.pk1 and o.pkv>=0: s.pack(1,role=='3')
        if role!='3' and o.twd==3 and iv>=1:
            for k in range(10): g(f's_load_dword s67, s[64:65], s66 offset:{1280*(k//5)+128*(k%5)}')
            g('s_add_u32 s66, s66, 2560\ns_cmp_eq_u32 s66, 20480\ns_cselect_b32 s66, 0, s66')
        if post: post(iv)
        s.dstamp(1,iv); g.wait_vm(('st',iv+1))
        if iv==(o.utw if o.pkv<0 else o.pk1+1): g.wait_vm('pk')
        if post: post(100+iv)
        s.dstamp(2,iv); g('s_barrier'); s.dstamp(3,iv)
    if pre: pre(9)
def xpaths(s):
    g=s.g; o=s.o; g.reset()
    if o.priox: g(f's_setprio {o.priox}')
    g(f's_and_b32 s14, s{sWAVE}, 3\ns_mul_i32 s80, s14, 8704\ns_add_u32 s80, s80, {L_KS+4608}')
    if o.bal: g(f's_lshr_b32 s9, s{sWG}, 3\ns_xor_b32 s9, s9, s{sWG}\ns_and_b32 s9, s9, 1\ns_mul_i32 s9, s9, 9\ns_xor_b32 s{sP}, s9, s{sWG}')
    else: g(f's_mov_b32 s{sP}, s{sWG}')
    g(f's_cmp_eq_u32 s14, 3\ns_cbranch_scc1 X3PATH\ns_and_b32 s9, s{sP}, 1\ns_add_u32 s10, s9, s14\ns_cmp_eq_u32 s10, 3\ns_cbranch_scc1 LOADONLY')
    g(f's_lshr_b32 s10, s{sP}, 1\ns_mul_i32 s10, s10, 5\ns_mul_i32 s9, s9, 3\ns_add_u32 s10, s10, s9\ns_add_u32 s{sD}, s10, s14')
    g(f's_mul_i32 s9, s{sD}, 384\nv_lshl_add_u32 v14, v0, 2, s9\nv_lshl_add_u32 v15, v0, 1, s9\ns_lshl_b32 s9, s{sD}, 1\nv_mov_b32 v16, s9')
    g('s_waitcnt lgkmcnt(0)')
    g.vmem(f'global_load_ushort v{LDT}, v16, s[{pLDT}:{pLDT+1}]','par')
    for a,p in enumerate([pAR,pAI,pBR,pBI,pCR,pCI]):
        g.vmem(f'global_load_dword v{RAW+a}, v14, s[{p}:{p+1}]','par'); g.vmem(f'global_load_ushort v{RAW+6+a}, v15, s[{p}:{p+1}] offset:256','par')
    g.vmem(f'global_load_ushort v{DSK}, v16, s[{pDS}:{pDS+1}]','par')
    s.loader_setup()
    g(f's_sub_u32 s{sKS}, s80, 4608\ns_mul_i32 s{sUB}, s14, 16640\ns_add_u32 s{sUB}, s{sUB}, {L_U}')
    g(f'v_lshl_add_u32 v{SA}, v0, 2, s{sKS}')
    for k in range(1,8): g(f'v_add_u32 v{SA+k}, {1088*k}, v{SA}')
    g(f'v_and_b32 v{FA}, 31, v0\nv_mul_u32_u24 v{FA}, 272, v{FA}\nv_lshrrev_b32 v19, 5, v0\nv_lshlrev_b32 v19, 4, v19\nv_add3_u32 v{FA}, v{FA}, v19, s{sKS}')
    if o.diag==4: s.dstamp(4,2); g.wait_vm('par'); s.dstamp(4,3)
    main=kgen_pre(s); M=None
    if o.kloop:
        H,T,M=s.kgen_chunk(0)
        for k in range(16): g(f'v_mov_b32 v{KA+k}, 0')
        emit(g,main); g('s_mov_b32 s15, 0\ns_cmp_lg_u32 s15, 0'); g.lab('KL')
        Mb=[[m[0],I(f's_cbranch_scc0 KM{k}'),m[1],I(f'KM{k}:')] for k,m in enumerate(M)]
        body=merge(H,Mb,4,4+8*o.mgap)+T
        t=G(); emit(t,body); g.lg=list(t.lg); emit(g,body); assert g.lg==t.lg
        g(f'v_mov_b32 v42, v112\nv_mov_b32 v43, v113\nv_mov_b32 v112, v114\nv_mov_b32 v113, v115\nv_mov_b32 v{CH}, v{CH+1}\nv_mov_b32 v{CH+1}, v{CH+2}')
        g('s_add_u32 s15, s15, 1\ns_cmp_lt_u32 s15, 3\ns_cbranch_scc1 KL'); main=[]
    else:
      for ch in range(3):
        H,T,M2=s.kgen_chunk(ch)
        if M: H=merge(H,M,4,4+8*o.mgap)
        main+=H+T; M=M2
    main+=[it for m in M for it in m]
    if o.nokgen: main=[I('s_nop 0')]*20
    n0=len(main)*o.kpre//100; rest=main[n0:]; extra={}
    for k in range(o.kiv): extra[k]=rest[len(rest)*k//o.kiv:len(rest)*(k+1)//o.kiv]
    emit(g,main[:n0]); s.dstamp(4,4); g('s_barrier'); s.stamp(1); s.dstamp(4,5)
    post=None; E=s.kgen_expand(); x0=o.kiv if rest else o.xiv
    cut=[0]+[k for k,it in enumerate(E) if it[0]=='cut']+[len(E)]
    if o.xn==1: cut=[0,len(E)]
    for k in range(len(cut)-1): extra[x0+k]=[('blk',[it for it in E[cut[k]:cut[k+1]] if it[0]!='cut'])]
    def pre(iv):
        if iv<8: return
        if iv==8: g(f's_mul_i32 s{sT0}, s{sD}, {ROWS}\nv_lshlrev_b32 v9, 4, v0')
        if iv==9: s.stamp(2)
        n=[0,o.n8,o.n8+o.n9,4]
        for c in range(n[iv-8],n[iv-7]):
            g(f's_add_u32 m0, s{sUB}, {32+4160*c}\ns_add_u32 s{sT1}, s{sT0}, {WS_UT-6+2*c}')
            for q in range(4): g.vmem(f'buffer_load_dwordx4 v9, s[{rWS}:{rWS+3}], s{sT1} offen offset:{1024*q} sc1 lds','u')
    s.upre=pre
    s.xloop('K',pre,post,extra)
    s.conv()
    g.lab('LOADONLY'); g.reset()
    if o.pkv<0: s.pack(0,0)
    s.loader_setup()
    if o.pkv<0: s.pack(1,0)
    g('s_barrier'); s.xloop('L'); g('s_endpgm')
    g.lab('X3PATH'); g.reset(); s.x3path()
def conv(s):
    g=s.g; o=s.o; VU,VK,VS=2,3,4; CA=32; UF=[64,128]; KF=[96,160]
    g(f'v_and_b32 v5, 3, v0\nv_mul_u32_u24 v5, 4160, v5\nv_bfe_u32 v6, v0, 2, 2\nv_lshl_add_u32 v5, v6, 3, v5\nv_lshrrev_b32 v7, 4, v0\nv_lshl_add_u32 v5, v7, 4, v5')
    g(f's_add_u32 s9, s{sUB}, 8\nv_add_u32 v{VU}, s9, v5\nv_and_b32 v8, 15, v0\nv_lshlrev_b32 v5, 5, v8\nv_lshlrev_b32 v6, 4, v7\nv_sub_u32 v6, v6, v5')
    g(f's_add_u32 s10, s{sKS}, 480\nv_add_u32 v{VK}, s10, v6')
    g(f'v_bfe_u32 v6, v0, 4, 1\nv_lshl_add_u32 v5, v6, 9, v5\nv_lshrrev_b32 v6, 5, v0\nv_lshl_add_u32 v{VS}, v6, 4, v5')
    g(f'v_mul_u32_u24 v5, 4160, v7\nv_lshl_add_u32 v5, v8, 1, v5\nv_add_u32 v5, s9, v5\nv_add_u32 v6, v7, v8\nv_cmp_gt_u32 vcc, 15, v6')
    for r in range(32): g(f'v_mov_b32 v{CA+r}, 0')
    g('s_barrier'); s.stamp(3); s.upre(10)
    g(f's_add_u32 s{sT0}, s{sT0}, {WS_YT}\ns_mov_b32 s15, 0')
    if o.prio: g(f's_setprio {o.prio3}')
    g.wait_vm('u'); s.stamp(4)
    g(f's_mov_b64 exec, vcc\nds_write_b16 v5, v{CA}\ns_mov_b64 exec, -1')
    def reads(b,off):
        R=[]
        for p in range(8):
            R.append(f'ds_read_b128 {v(KF[b]+4*p,4)}, v{VK} offset:{3584-512*p+off}')
            R+=[f'ds_read_b64 {v(UF[b]+4*p+2*h,2)}, v{VU} offset:{512*p+8*h+off}' for h in range(2)]
        return R
    rem={q:[(p,q-p) for p in range(q+1)] for q in range(8)}; order=[]; last=[]
    while any(rem.values()):
        c=[q for q in rem if rem[q] and q not in last[-3:]] or [q for q in rem if rem[q] and q not in last[-2:]] or [q for q in rem if rem[q]]
        q=max(c,key=lambda q:len(rem[q])); order.append((q,)+rem[q].pop(0)); last.append(q)
    for t in reads(0,0): g(t)
    g.lab('CV')
    for b in range(2):
        R=reads(1-b,64 if b==0 else 0); g('s_waitcnt lgkmcnt(0)')
        for k,(q,p,m) in enumerate(order):
            g(f'v_mfma_f32_16x16x32_bf16 {v(CA+4*q,4)}, {v(UF[b]+4*p,4)}, {v(KF[b]+4*m,4)}, {v(CA+4*q,4)}')
            if k<24: g(R[k])
            if k==26 and b==0: g(f'v_add_u32 v{VU}, 128, v{VU}\nv_add_u32 v{VK}, 128, v{VK}')
            if k==34 and b==1: g(f's_add_u32 s15, s15, 1\ns_cmp_lt_u32 s15, {1 if o.noconv else 4}')
    g('s_cbranch_scc1 CV'); s.stamp(5)
    g(f's_lshr_b32 s9, s{sD}, 4\ns_lshl_b32 s9, s9, 7\ns_and_b32 s10, s{sD}, 15\ns_lshl_b32 s10, s10, {0 if o.sp else 2}\ns_add_u32 s9, s9, s10\ns_add_u32 s9, s9, {FL_Y}\nv_mov_b32 v5, s9\nv_mov_b32 v6, 1')
    for q in range(8):
        for h in range(2): g(f'v_cvt_pk_bf16_f32 v{10+2*q+h}, v{CA+4*q+2*h}, v{CA+4*q+2*h+1}')
    for q in range(0,8,2):
        x=10+2*q; g(f'v_permlane16_swap_b32 v{x}, v{x+2}\nv_permlane16_swap_b32 v{x+1}, v{x+3}')
        g(f'buffer_store_dwordx4 {v(x,4)}, v{VS}, s[{rWS}:{rWS+3}], s{sT0} offen offset:{512*q} sc1')
    g(f's_waitcnt vmcnt(0)\ns_mov_b64 exec, 1\nbuffer_store_{"byte" if o.sp else "dword"} v6, v5, s[{rWS}:{rWS+3}], 0 offen sc1')
    s.stamp(6); s.dump_stamps(); g('s_endpgm')
def x3path(s):
    g=s.g; o=s.o; M=f's[{sKS}:{sKS+1}]'
    if o.pkv<0: s.pack(0,1)
    s.loader_setup()
    srd(g,rGW,pGW,1280); g(f'v_lshlrev_b32 v9, 4, v0\ns_mov_b32 m0, {L_GW}')
    for k in range(4): g(f'v_mov_b32 v{28+k}, 0')
    for q in range(2): g.vmem(f'buffer_load_dwordx4 v9, s[{rGW}:{rGW+3}], 0 offen offset:{1024*q} lds','gw')
    if o.tlb:
        srd(g,rWD,pOUT,2621440); g(f'v_min_u32 v40, {(WS_END>>o.tlb)-1}, v0\nv_lshlrev_b32 v40, {o.tlb}, v40\nv_lshlrev_b32 v41, {o.tlb}, v0')
        g.vmem(f'buffer_load_dword v40, v40, s[{rWS}:{rWS+3}], 0 offen','tl'); g.vmem(f'buffer_load_dword v41, v41, s[{rWD}:{rWD+3}], 0 offen','tl')
    g(f's_cmp_eq_u32 s{sWG}, 0\ns_cbranch_scc0 NOINIT')
    for k in range(10):
        if k%4==0: g(f's_mov_b32 s9, {WS_FL+1024*k}')
        g(f'buffer_store_dwordx4 v[28:31], v9, s[{rWS}:{rWS+3}], s9 offen offset:{1024*(k%4)} sc1')
    g(f's_waitcnt vmcnt(0)\nv_mov_b32 v11, 1\ns_mov_b64 exec, 1\nglobal_store_dword v31, v11, s[{pDBG}:{pDBG+1}] sc1\ns_mov_b64 exec, -1')
    g.lab('NOINIT')
    g(f'v_mov_b32 v10, {L_SY}\nds_write_b128 v10, v[28:31]\nds_write_b128 v10, v[28:31] offset:16')
    g(f's_and_b32 s9, s{sJ}, 1\ns_lshl_b32 s9, s9, 2\nv_lshrrev_b32 v20, 4, v0\nv_add_u32 v21, s9, v20\nv_and_b32 v22, 7, v0\nv_xor_b32 v21, v21, v22')
    g(f'v_lshrrev_b32 v18, 3, v0\ns_lshl_b32 s9, s{sJ}, 10\nv_lshlrev_b32 v23, 7, v18\nv_lshl_add_u32 v23, v21, 4, v23\nv_add_u32 v10, s9, v23\nv_add_u32 v11, {2*STAGE}, v10')
    g(f'v_lshlrev_b32 v12, 4, v22\nv_add_u32 v12, {L_GW}, v12\ns_lshl_b32 s79, s76, 7')
    s.dstamp(4,3)
    if o.pkv<0: s.pack(1,1)
    g.wait_lg(); g.wait_vm('gw'); s.dstamp(4,4); g('s_barrier'); s.stamp(1); s.dstamp(4,5)
    def gate(st): g(f'v_add_u32 v13, s79, v12\nds_read_b128 v[20:23], v{11 if SLOT(st)==2*STAGE else 10} offset:{SLOT(st)%(2*STAGE)}\nds_read_b128 v[24:27], v13\ns_add_u32 s79, s79, 128\ns_cmp_eq_u32 s79, 1280\ns_cselect_b32 s79, 0, s79')
    def dots():
        g.wait_lg()
        for k in range(4):
            g(f'v_lshlrev_b32 v28, 16, v{20+k}\nv_lshlrev_b32 v29, 16, v{24+k}\nv_and_b32 v{20+k}, 0xffff0000, v{20+k}\nv_and_b32 v{24+k}, 0xffff0000, v{24+k}')
            g(f'v_fmac_f32 v30, v28, v29\nv_fmac_f32 v30, v{20+k}, v{24+k}')
    def pre(iv):
        if iv==9: return
        gate(iv)
        if iv==o.utw+1:
            g.wait_vm('go'); g('v_readfirstlane_b32 s9, v32\ns_nop 0\ns_cmp_eq_u32 s9, 1\ns_cbranch_scc1 GOOK')
            s.spin(f'global_load_dword v32, v31, s[{pDBG}:{pDBG+1}] sc1','v_cmp_eq_u32 vcc, 1, v32','-1'); g.lab('GOOK')
            g(f's_lshl_b32 s9, s76, 7\ns_lshl_b32 s10, s{sI}, 2\ns_add_u32 s9, s9, s10\ns_add_u32 s9, s9, {FL_UT}\ns_cmp_lt_u32 s{sJ}, 10\ns_cselect_b32 s9, s9, 0x40000000')
            g(f's_lshl_b32 s10, s{sP}, 2\ns_add_u32 s10, s10, {FL_WP}\nv_mov_b32 v19, s9\ns_mov_b64 exec, 1\nv_mov_b32 v19, s10\ns_mov_b64 exec, {3 if o.pkv<0 else 2}')
            g.vmem(f'buffer_store_dword v32, v19, s[{rWS}:{rWS+3}], 0 offen sc1'); g('s_mov_b64 exec, -1')
        if o.pkv>=0 and iv==o.pk1+2:
            assert iv>o.utw+1
            g('s_mov_b64 exec, 1'); g.vmem(f'buffer_store_dword v32, v19, s[{rWS}:{rWS+3}], 0 offen sc1'); g('s_mov_b64 exec, -1')
    def post(iv):
        if iv==0: g.vmem(f'global_load_dword v32, v31, s[{pDBG}:{pDBG+1}] sc1','go')
        if iv==o.ufv-1:
            g(f's_lshr_b32 s10, s{sP}, 1\ns_mul_i32 s10, s10, 5\ns_and_b32 s9, s{sP}, 1\ns_mul_i32 s11, s9, 3\ns_add_u32 s10, s10, s11\ns_add_u32 s11, s10, 2\ns_sub_u32 s11, s11, s9')
            g(f's_mul_i32 s9, s9, 33\ns_sub_u32 s9, 34, s9\nv_min_u32 v39, s9, v0\ns_mul_i32 s9, s10, {ROWS}\ns_add_u32 s9, s9, {WS_UT}\nv_lshl_add_u32 v38, v0, 7, s9\nv_lshl_add_u32 v39, v39, 7, s9\nv_add_u32 v39, 8192, v39')
            g(f's_lshr_b32 s10, s10, 6\ns_lshr_b32 s11, s11, 6\ns_sub_u32 s11, s11, s10\ns_lshl_b32 s11, s11, 7\ns_lshl_b32 s10, s10, 7\ns_add_u32 s10, s10, {FL_UT}')
            g(f'v_bfe_u32 v33, v0, 4, 1\nv_mul_u32_u24 v33, s11, v33\nv_and_b32 v34, 15, v0\nv_lshl_add_u32 v33, v34, 2, v33\nv_add_u32 v33, s10, v33')
            if o.pkv<0: g(f's_lshl_b32 s9, s{sDJ}, 7\ns_add_u32 s9, s9, {FL_WP}\nv_and_b32 v34, 31, v0\ns_mov_b32 exec_lo, 0\nv_lshl_add_u32 v33, v34, 2, s9\ns_mov_b32 exec_lo, -1')
            g.vmem(f'buffer_load_dword v36, v33, s[{rWS}:{rWS+3}], 0 offen sc1','uf')
        if o.warm and 0<=iv-o.warm<8//o.wn: s.warm(iv-o.warm)
        if iv<100: dots()
        if iv==100+o.ufv:
            g.wait_vm('uf'); g('v_cmp_eq_u32 vcc, 1, v36\ns_nop 0\ns_cmp_eq_u64 vcc, -1\ns_cbranch_scc1 UFOK')
            s.spin(f'buffer_load_dword v36, v33, s[{rWS}:{rWS+3}], 0 offen sc1','v_cmp_eq_u32 vcc, 1, v36','-1'); g.lab('UFOK')
        if o.utch and iv==o.utch:
            for k in range(2): g.vmem(f'buffer_load_dword v{38+k}, v{38+k}, s[{rWS}:{rWS+3}], 0 offen sc1','ut')
    s.xloop('3',pre,post)
    s.stamp(2); gate(9); dots(); g('s_barrier')
    for c in['quad_perm:[1,0,3,2]','quad_perm:[2,3,0,1]','row_half_mirror']: g(f's_nop 2\nv_add_f32_dpp v30, v30, v30 {c} row_mask:0xf bank_mask:0xf')
    g(f'v_mul_f32 v30, {hex(fb(-1.4426950408889634))}, v30\nv_exp_f32 v30, v30\ns_lshl_b32 s9, s{sI}, 9\nv_add_f32 v30, 1.0, v30\nv_rcp_f32 v30, v30')
    g(f's_lshl_b32 s10, s{sJ}, 5\ns_add_u32 s9, s9, s10\ns_add_u32 s9, s9, {WS_G}\nv_lshlrev_b32 v18, 2, v18\ns_mov_b32 exec_lo, 0x01010101\ns_mov_b32 exec_hi, 0x01010101')
    g(f'buffer_store_dword v30, v18, s[{rWS}:{rWS+3}], s9 offen sc1')
    if o.pkv>=0:
        g(f's_lshl_b32 s9, s{sDJ}, 7\ns_add_u32 s9, s9, {FL_WP}')
        s.sspin(f's_buffer_load_dwordx16 s[16:31], s[{rWS}:{rWS+3}], s9 glc\ns_buffer_load_dwordx16 s[52:67], s[{rWS}:{rWS+3}], s9 offset:64 glc',list(range(16,32))+list(range(52,68)),1,'s_waitcnt vmcnt(0)')
        g(f'v_mov_b32 v20, {L_SY}\nv_mov_b32 v21, 1\nds_write_b32 v20, v21 offset:12')
    g('s_waitcnt vmcnt(0)'); s.arrive_h(20,21); s.stamp(3)
    if o.sp==2: s.lspin(34,35,L_SY+4,4); s.stamp(4)
    elif o.sp==3:
        g(f's_lshr_b32 s9, s{sTI}, 1\ns_lshl_b32 s9, s9, 7\ns_add_u32 s9, s9, {FL_H}'); s.lspin(34,35,L_SY+4,o.hn)
        t=f's_buffer_load_dwordx16 s[16:31], s[{rWS}:{rWS+3}], s9 glc\ns_waitcnt lgkmcnt(0)\n'
        for k in range(4): t+=f's_and_b64 s[{16+4*k}:{17+4*k}], s[{16+4*k}:{17+4*k}], s[{18+4*k}:{19+4*k}]\ns_and_b32 s{16+k}, s{16+4*k}, s{17+4*k}\nv_mov_b32 v{36+k}, s{16+k}\n'
        s.sspin(t+'ds_write_b128 v34, v[36:39] offset:12',range(16,20),1,'ds_read_b32 v35, v34\ns_waitcnt lgkmcnt(0)\n'*o.pace)
        g('v_mov_b32 v36, 1\nv_mov_b32 v37, 1\nds_write_b64 v34, v[36:37] offset:12\nds_write_b64 v34, v[36:37] offset:20'); s.stamp(4)
    elif o.sp:
        g(f's_lshr_b32 s9, s{sTI}, 1\ns_lshl_b32 s9, s9, 2\ns_and_b32 s10, s{sTI}, 1\ns_add_u32 s9, s9, s10\ns_lshl_b32 s9, s9, 5\ns_add_u32 s9, s9, {FL_H}')
        s.sspin(f's_buffer_load_dwordx8 s[16:23], s[{rWS}:{rWS+3}], s9 glc',range(16,24),1); s.stamp(4)
    else:
        g(f's_lshr_b32 s9, s{sTI}, 1\ns_lshl_b32 s9, s9, 7\ns_add_u32 s9, s9, {FL_H}\nv_lshrrev_b32 v20, 2, v0\nv_lshl_add_u32 v33, v20, 2, s9\nv_mov_b32 v34, {L_SY+8}\ns_mov_b64 {M}, 0')
        nq=3*o.ht
        g(f's_mul_i32 s9, s{sTI}, 196608\ns_and_b32 s10, s{sDJ}, {8//max(o.ht,1)-1}\ns_mul_i32 s10, s10, {512*nq}\ns_add_u32 s9, s9, s10\nv_mul_u32_u24 v20, 12288, v20\nv_and_b32 v21, 3, v0\nv_lshl_add_u32 v20, v21, 7, v20')
        g('s_mov_b32 s15, 0'); g.lab('HP'); g(f'buffer_load_dword v32, v33, s[{rWS}:{rWS+3}], 0 offen sc1\ns_waitcnt vmcnt(0)\nv_cmp_eq_u32 vcc, 1, v32\ns_add_u32 s15, s15, 1\ns_nop 0')
        g(f'v_mov_b32 v36, vcc_lo\nv_mov_b32 v37, vcc_hi\ns_andn2_b64 s[10:11], vcc, {M}\ns_cbranch_scc0 HN\nds_write_b64 v34, v[36:37]\ns_mov_b64 {M}, vcc')
        if nq:
            g('s_mov_b64 exec, s[10:11]')
            for q in range(nq): g(f'buffer_load_dword v{40+q}, v20, s[{rWS}:{rWS+3}], s9 offen offset:{512*q} sc1')
            g('s_mov_b64 exec, -1')
        g.lab('HN'); g(f's_cmp_gt_u32 s15, {SPIN}\ns_cbranch_scc1 HQ\ns_cmp_eq_u64 vcc, -1\ns_cbranch_scc0 HP'); g.lab('HQ')
        g(f'v_mov_b32 v36, -1\nv_mov_b32 v37, -1\nds_write_b64 v34, v[36:37]'); s.stamp(4)
    g(f's_lshl_b32 s9, s{sTI}, 8\ns_add_u32 s9, s9, {WS_G}\ns_mov_b32 m0, {L_G}\nv_lshlrev_b32 v20, 2, v0\nbuffer_load_dword v20, s[{rWS}:{rWS+3}], s9 offen sc1 lds')
    g(f's_mul_i32 s9, s{sDJ}, 640\ns_add_u32 s9, s9, {FL_Y}\nv_lshrrev_b32 v20, 3, v0\nv_and_b32 v21, 7, v0\nv_lshlrev_b32 v22, 3, v21\nv_lshl_add_u32 v22, v20, 7, v22\nv_add_u32 v33, s9, v22')
    g(f'v_mul_u32_u24 v20, {ROWS}, v20\nv_lshl_add_u32 v20, v21, 4, v20\ns_mul_i32 s9, s{sDJ}, {80*ROWS}\ns_lshl_b32 s10, s{sTI}, 7\ns_add_u32 s9, s9, s10')
    if o.sp:
        if o.sp>=2 and o.yn: s.lspin(34,35,L_SY+8,o.yn)
        g(f's_mul_i32 s10, s{sDJ}, 640\ns_add_u32 s10, s10, {FL_Y}')
        s.sspin('\n'.join(f's_buffer_load_dwordx4 s[{16+4*k}:{19+4*k}], s[{rWS}:{rWS+3}], s10 offset:{128*k} glc' for k in range(5)),range(16,36),0x01010101)
    else:
        g(f's_mov_b32 s{sKS}, -1\ns_mov_b32 s{sKS+1}, 0xff\ns_mov_b64 exec, {M}')
        s.spin(f'buffer_load_dwordx2 v[36:37], v33, s[{rWS}:{rWS+3}], 0 offen sc1','v_and_b32 v36, v36, v37\nv_cmp_eq_u32 vcc, 1, v36',M)
    g('s_mov_b64 exec, -1'); s.stamp(5)
    for q in range(10):
        g(f's_mov_b32 m0, {L_KS+4608+(q>>2)*8704+(q&3)*1024}\ns_add_u32 s10, s9, {WS_YT+8*q*ROWS}\nbuffer_load_dwordx4 v20, s[{rWS}:{rWS+3}], s10 offen sc1 lds')
    g('s_waitcnt vmcnt(0)'); s.stamp(6); g('s_barrier'); s.dump_stamps((7,[(k,8+k) for k in range(1,7)])); g('s_endpgm')
def warm(s,k):
    g=s.g
    if k==0: g(f's_lshl_b32 s9, s{sDJ}, 2\ns_and_b32 s10, s{sTI}, 3\ns_add_u32 s9, s9, s10\ns_mul_i32 s9, s9, 61440\ns_add_u32 s9, s9, {WS_WP}\nv_lshl_add_u32 v37, v0, 7, s9')
    for q in range(s.o.wn):
        if k*s.o.wn+q==7: g('v_subrev_u32 v37, 4096, v37')
        g.vmem(f'buffer_load_dword v{40+q}, v37, s[{rWS}:{rWS+3}], 0 offen sc1','wm'); g('v_add_u32 v37, 8192, v37')
```

```python
import sys, os
sys.path.insert(0, os.path.dirname(os.path.abspath(__file__)))
from asmlib import G, v, s_, check
from consts import *
class Gen:
    def __init__(s,o):
        s.o=o; s.g=G(); s.nst=0; s.xw=True; s.uid=0
    def L(s,p): s.uid+=1; return f'{p}_{s.uid}'
    def dstamp(s,nm,iv):
        if s.o.diag==nm and 0<=iv-s.o.d0<7: s.stamp(1+iv-s.o.d0,True)
    def stamp(s,k,d=False):
        if s.o.diag and k and not d and not (s.o.diag==6 and s.xw): return
        if s.o.stamps: s.g(f's_memrealtime s[{84+2*k}:{85+2*k}]' if not s.o.clk else f's_memtime s[{84+2*k}:{85+2*k}] ; memrealtime')
    def dump_stamps(s,who=None):
        if not s.o.stamps: return
        g=s.g
        g('s_waitcnt lgkmcnt(0)\ns_mov_b64 exec, 1')
        if s.o.stamps==2:
            if who is None: return
            l=s.L('DS'); g(f's_cmp_eq_u32 s{sWAVE}, {who[0]}\ns_cbranch_scc0 {l}\ns_not_b32 s84, s84\nv_mov_b32 v1, 0')
            for k,slot in who[1]: g(f'v_mov_b32 v2, s{84+2*k}\nglobal_atomic_umax v1, v2, s[{pDBG}:{pDBG+1}] offset:{4*slot}')
            g.lab(l); return
        g(f's_lshl_b32 s9, s{sWG}, 3\ns_add_u32 s9, s9, s{sWAVE}\ns_lshl_b32 s9, s9, 5\ns_add_u32 s9, s9, {WS_ST}\nv_mov_b32 v1, s9')
        for k in range(8): g(f'v_mov_b32 v{4+k}, s{84+2*k}')
        g(f'buffer_store_dwordx4 v[4:7], v1, s[{rWS}:{rWS+3}], 0 offen\nbuffer_store_dwordx4 v[8:11], v1, s[{rWS}:{rWS+3}], 0 offen offset:16')
    def prologue(s):
        g=s.g; o=s.o
        g(f's_cmp_ge_u32 s{sWG}, 256\ns_cbranch_scc1 END')
        g('s_load_dwordx16 s[16:31], s[0:1], 0\ns_load_dwordx16 s[32:47], s[0:1], 64\ns_load_dwordx2 s[48:49], s[0:1], 128')
        if o.cwarm:
            g('s_getpc_b64 s[50:51]'); g.lab('PC0')
            g('v_lshlrev_b32 v1, 6, v0\nv_min_u32 v1, END-PC0, v1\nglobal_load_dword v255, v1, s[50:51]')
        if o.stamps:
            for k in range(1,8): g(f's_mov_b32 s{84+2*k}, 0')
        s.stamp(0)
        g('v_lshrrev_b32 v1, 6, v0\nv_and_b32 v0, 63, v0')
        g(f'v_readfirstlane_b32 s{sWAVE}, v1')
        g(f's_and_b32 s9, s{sWG}, 7\ns_lshr_b32 s10, s{sWG}, 3')
        g(f's_lshr_b32 s11, s9, 2\ns_lshl_b32 s11, s11, 3\ns_and_b32 s12, s10, 7\ns_add_u32 s{sI}, s11, s12')
        g(f's_and_b32 s11, s9, 3\ns_lshl_b32 s11, s11, 2\ns_lshr_b32 s12, s10, 3\ns_add_u32 s{sJ}, s11, s12')
        if o.jmap:
            jt=[0,7,3,4, 11,12,8,15, 6,2,9,5, 1,13,14,10]; c=sum(x<<(4*k) for k,x in enumerate(jt))
            g(f's_mov_b32 s12, {hex(c&0xffffffff)}\ns_mov_b32 s13, {hex(c>>32)}\ns_lshl_b32 s11, s{sJ}, 2\ns_lshr_b64 s[12:13], s[12:13], s11\ns_and_b32 s{sJ}, s12, 15')
        if o.g2map==0:
            g(f's_lshl_b32 s11, s9, 2\ns_and_b32 s12, s10, 3\ns_add_u32 s{sTI}, s11, s12\ns_lshr_b32 s{sDJ}, s10, 2')
        else:
            g(f's_lshr_b32 s11, s9, 1\ns_lshl_b32 s11, s11, 3\ns_and_b32 s12, s10, 7\ns_add_u32 s{sTI}, s11, s12')
            g(f's_and_b32 s11, s9, 1\ns_lshl_b32 s11, s11, 2\ns_lshr_b32 s12, s10, 3\ns_add_u32 s{sDJ}, s11, s12')
        g(f's_cmp_lt_u32 s{sWAVE}, 4\ns_cbranch_scc1 CPATH')
    VX,VW=2,6
    def xoffs(s,VX,t=10):
        g=s.g
        g(f's_mul_i32 s9, s{sI}, {128*1280}')
        g(f'v_lshrrev_b32 v{t}, 3, v0\nv_mul_u32_u24 v{t}, 1280, v{t}\nv_add_u32 v{t}, s9, v{t}')
        g(f'v_and_b32 v{t+1}, 7, v0\nv_lshrrev_b32 v{t+2}, 4, v0\nv_xor_b32 v{t+1}, v{t+1}, v{t+2}')
        g(f'v_lshl_add_u32 v{VX}, v{t+1}, 4, v{t}')
        g(f'v_xor_b32 v{t+1}, 4, v{t+1}'); g(f'v_lshl_add_u32 v{VX+1}, v{t+1}, 4, v{t}\nv_add_u32 v{VX+1}, {8*1280-1024}, v{VX+1}')
        g(f'v_add_u32 v{VX+2}, {16*1280-2048}, v{VX}\nv_add_u32 v{VX+3}, {16*1280-2048}, v{VX+1}')
    def loader_setup(s,st0=None):
        g=s.g; VX,VW=s.VX,s.VW
        if st0 is None: st0=s.o.np
        g(f's_and_b32 s14, s{sWAVE}, 3')
        g(f's_lshl_b32 s12, s14, 12\ns_mul_i32 s13, s14, 3072\ns_mul_i32 s{sKB0}, s14, 40960'); g(f's_add_u32 s13, s13, {WOFF}')
        s.xoffs(VX)
        c=sum(x<<(4*k) for k,x in enumerate([0,1,2,3,4,5,6,7,8,9,0,1,4,4,7,7]))
        g(f's_mov_b32 s76, {hex(c&0xffffffff)}\ns_mov_b32 s77, {hex(c>>32)}\ns_lshl_b32 s9, s{sJ}, 2\ns_lshr_b64 s[76:77], s[76:77], s9\ns_and_b32 s76, s76, 15')
        if st0: g(f's_add_u32 s9, s76, {st0}\ns_cmp_ge_u32 s9, 10\ns_cselect_b32 s10, 10, 0\ns_sub_u32 s9, s9, s10')
        r='s9' if st0 else 's76'
        g(f's_mul_i32 s{sWO}, {r}, 196608\ns_lshl_b32 s9, {r}, 7\ns_add_u32 s{sXO}, s9, s{sKB0}')
        g(f's_mul_i32 s9, s14, {16*3072}\ns_mul_i32 s10, s{sJ}, 192\ns_add_u32 s9, s9, s10')
        for q in range(3):
            g(f'v_add_u32 v10, {64*q}, v0\nv_mul_u32_u24 v11, 171, v10\nv_lshrrev_b32 v11, 11, v11')
            if s.o.m16: g('v_bfe_u32 v12, v11, 3, 1\nv_mul_u32_u24 v13, 12, v11\nv_sub_u32 v13, v10, v13\nv_lshlrev_b32 v12, 1, v12\nv_xor_b32 v12, v12, v13\nv_sub_u32 v12, v12, v13\nv_add_u32 v12, v12, v0')
            g(f'v_mul_u32_u24 v11, {3072-192}, v11\nv_lshl_add_u32 v11, v{12 if s.o.m16 else 0}, 4, v11\nv_add_u32 v{VW+q}, s9, v11')
        if s.o.fakew:
            g(f's_mul_i32 s9, s14, 3072\ns_mul_i32 s10, s{sJ}, 12288\ns_add_u32 s9, s9, s10')
            for q in range(3): g(f'v_lshl_add_u32 v{VW+q}, v0, 4, s9')
        s.dstamp(4,0); g('s_waitcnt lgkmcnt(0)'); s.dstamp(4,1)
        srd(g,rX,pU,2621440); srd(g,rWG,pWG,1966080); srd(g,rWU,pWU,1966080); srd(g,rWS,pWS,WS_END)
    def stage(s,st,x3=False):
        VX,VW=s.VX,s.VW; b=SLOT(st); t=('st',st)
        G_=[]; ad='sub' if st&1 else 'add'
        if s.o.nodma and st>=3: return G_
        x=lambda q:('vm',f'buffer_load_dwordx4 v{VX+q}, s[{rX}:{rX+3}], s{sXO} offen offset:{1024*q} lds',t)
        w=lambda r,q:('vm',f'buffer_load_dwordx4 v{VW+q}, s[{r}:{r+3}], s{sWO} offen offset:{1024*q}{[""," nt"," sc1"," sc0"," sc0 sc1"][s.o.wfl]} lds',t)
        G_+=[[('i',f's_add_u32 m0, s12, {b}\ns_nop 0'),x(0)],[x(1)],[x(2)],[x(3)]]
        G_+=[[('i',f's_add_u32 m0, s13, {b}\ns_add_u32 s{sXO}, s{sXO}, 128'),w(rWG,0)],[w(rWG,1)],[w(rWG,2)]]
        G_+=[[('i',f's_add_u32 m0, s13, {b+UPOFF}\ns_nop 0'),w(rWU,0)],[w(rWU,1)],[w(rWU,2),('i',f's_add_u32 s{sWO}, s{sWO}, 196608\ns_cmp_eq_u32 s{sWO}, 1966080\ns_cselect_b32 s{sWO}, 0, s{sWO}\ns_cselect_b32 s{sXO}, s{sKB0}, s{sXO}')]]
        return G_
    def flat(s,G_): return [it for grp in G_ for it in grp]
    def spin(s,load,cmp_,mask):
        g=s.g; a=s.L('SP'); b=s.L('SX')
        g('s_mov_b32 s15, 0'); g.lab(a); g(load); g('s_waitcnt vmcnt(0)'); g(cmp_)
        g(f's_add_u32 s15, s15, 1\ns_cmp_gt_u32 s15, {SPIN}\ns_cbranch_scc1 {b}\ns_cmp_eq_u64 vcc, {mask}\ns_cbranch_scc0 {a}'); g.lab(b)
    def sspin(s,loads,regs,want,pace=''):
        g=s.g; a=s.L('SP'); b=s.L('SX')
        g('s_mov_b32 s15, 0'); g.lab(a); g(loads); g('s_waitcnt lgkmcnt(0)')
        r=list(regs)
        while len(r)>2: g(f's_and_b64 s[{r[0]}:{r[1]}], s[{r[0]}:{r[1]}], s[{r[-2]}:{r[-1]}]'); r=r[:-2]
        g(f's_and_b32 s{r[0]}, s{r[0]}, s{r[1]}\ns_add_u32 s15, s15, 1\ns_cmp_gt_u32 s15, {SPIN}\ns_cbranch_scc1 {b}\ns_cmp_eq_u32 s{r[0]}, {want}')
        if pace: g(f's_cbranch_scc1 {b}'); g(pace); g(f's_branch {a}')
        else: g(f's_cbranch_scc0 {a}')
        g.lab(b)
    def lspin(s,va,vb,addr,n):
        g=s.g; a=s.L('LP'); b=s.L('LX')
        g(f'v_mov_b32 v{va}, {addr}\ns_mov_b32 s15, 0'); g.lab(a); g(f'ds_read_b32 v{vb}, v{va}\ns_waitcnt lgkmcnt(0)\nv_readfirstlane_b32 s11, v{vb}')
        g(f's_add_u32 s15, s15, 1\ns_cmp_gt_u32 s15, {SPIN*8}\ns_cbranch_scc1 {b}\ns_cmp_ge_u32 s11, {n}\ns_cbranch_scc0 {a}'); g.lab(b)
    def arrive_h(s,va,vb):
        g=s.g; l=s.L('HA')
        g(f's_mov_b64 exec, 1\nv_mov_b32 v{va}, {L_SY}\nv_mov_b32 v{vb}, 1\nds_add_rtn_u32 v{va}, v{va}, v{vb}\ns_waitcnt lgkmcnt(0)')
        g(f'v_readfirstlane_b32 s9, v{va}\ns_lshl_b32 s10, s{sI}, 7\ns_lshl_b32 s11, s{sJ}, 2\ns_cmp_eq_u32 s9, 4\ns_cbranch_scc0 {l}')
        g(f's_add_u32 s10, s10, s11\ns_add_u32 s10, s10, {FL_H}\nv_mov_b32 v{va}, s10')
        g(f'buffer_store_dword v{vb}, v{va}, s[{rWS}:{rWS+3}], 0 offen sc1'); g.lab(l); g('s_mov_b64 exec, -1')
    from gen_x import pack, xpose, xloop, xpaths, kgen_chunk, kgen_expand, conv, x3path, cmul, warm
    from gen_c import cpath, gemm1, gemm2, final
    def build(s):
        g=s.g
        s.prologue(); s.xpaths(); s.xw=False; s.cpath()
        g.lab('END'); g('s_endpgm')
        bad=check(g.L)
        for b in bad: print('HAZARD',b,file=sys.stderr)
        ref=open(os.path.join(os.path.dirname(os.path.abspath(__file__)),'..','cdna_kernels',NAME+'.s.ref')).read()
        hdr=ref[:ref.index('; Override launch')]
        hdr+='; generated by gen/gen.py: one persistent launch, 256 workgroups x 8 waves (4 GEMM waves + 4 loader/SSM waves)\n'
        hdr+='; @launch grid=(256,1,1) block=(512,1,1) lds=163840\n'
        hdr+=f'.amdgcn_target "amdgcn-amd-amdhsa--gfx950"\n.text\n.globl {NAME}_kernel\n.p2align 8\n.type {NAME}_kernel,@function\n{NAME}_kernel:\n'
        ftr=ref[ref.index('.section .rodata'):]
        return hdr+g.text()+ftr, len(bad)
def make(**kw):
    o=Opt(); o.stamps=False; o.rot=1; o.g2map=0; o.pk=0; o.prio=1; o.prio2=3; o.prio3=2; o.mgap=8; o.w0=12; o.w8=12; o.w9=8; o.dfrac=75; o.warm=0; o.heavy=10; o.n1=1; o.na=6; o.swp=1; o.kloop=0; o.ilv=1; o.ub=4; o.wn=2; o.kpre=100; o.kiv=2; o.utv=2; o.twd=0; o.m16=0; o.touch=1; o.pre=2; o.mprio=0; o.ual=0; o.prioc=0; o.priox=1; o.diag=0; o.d0=0; o.cwarm=1; o.nokgen=0; o.nodma=0; o.clk=0; o.bal=1; o.jmap=1; o.xt=0; o.fakew=0; o.wfl=0; o.r2=3; o.fake=0; o.utw=1; o.tord=9; o.ufv=6; o.usp=2; o.tw0=0; o.utch=106; o.hold=0; o.pkv=2; o.pk1=4; o.twn=4; o.prioe=3; o.priop=0; o.np=2; o.n8=3; o.n9=1; o.xiv=1; o.xn=2; o.sp=3; o.pace=2; o.hn=4; o.yst=3; o.yn=4; o.nsc=0; o.noconv=0; o.rt=0; o.ht=1; o.late=1; o.tlb=0
    for k,x in kw.items(): setattr(o,k,x)
    return Gen(o).build()
if __name__=='__main__':
    kw={}
    out=sys.argv[1]
    for a in sys.argv[2:]:
        k,x=a.split('='); kw[k]=int(x)
    t,nb=make(**kw)
    open(out,'w').write(t)
    print('wrote',out,len(t.split('\n')),'lines, hazards:',nb)
```

```python
from consts import *
ACC=12; FR=[108,128]; VXA=2; VWA=6; VH=7
def cpath(s):
    g=s.g; o=s.o; g.reset(); g.lab('CPATH')
    if o.prioc: g(f's_setprio {o.prioc}')
    s.loader_setup(0)
    touch=lambda: s.wtouch(max(o.tb,o.np),min(o.tn,10-max(o.tb,o.np)))
    for st in range(o.np-o.sord):
        if o.tord==st: touch()
        emit(g,s.flat(s.stage(st))); s.dstamp(4,2+st)
    assert not(o.cpre and (o.npre or o.np>2))
    s.g2setup()
    def cp(k):
        if o.cpo==k:
            for b in range(min(o.cpre,2)): s.cpre(1,b)
    if o.cpre: s.cpre(0)
    cp(0)
    if o.tord==o.np: touch()
    s.xpose(0); g.wait_vm(('st',0)); s.dstamp(4,5); s.xpose(1)
    cp(1)
    if o.tord==8: touch()
    if o.sord: emit(g,s.flat(s.stage(o.np-1)))
    if o.tord==9: touch()
    cp(2)
    g(f's_lshr_b32 s12, s{sWAVE}, 1\ns_and_b32 s13, s{sWAVE}, 1')
    g('v_and_b32 v10, 31, v0\nv_lshlrev_b32 v10, 7, v10\ns_lshl_b32 s9, s12, 13\nv_add_u32 v10, s9, v10')
    g('v_bfe_u32 v11, v0, 1, 3\nv_lshrrev_b32 v12, 5, v0\nv_xor_b32 v11, v11, v12')
    g(f'v_lshl_add_u32 v{VXA}, v11, 4, v10')
    for ks in(1,2,3): g(f'v_xor_b32 v{VXA+ks}, {32*ks}, v{VXA}')
    for ks in range(4): g(f'v_add_u32 v{VXA+ks}, {SLOT(0)}, v{VXA+ks}')
    g(f'v_bfe_u32 v10, v0, 4, 1\nv_mul_u32_u24 v13, {UPOFF}, v10\nv_bfe_u32 v11, v0, 2, 2\nv_lshl_add_u32 v11, v12, 3, v11')
    g(f'v_mul_u32_u24 v11, 192, v11\nv_add_u32 v13, v13, v11\nv_and_b32 v11, 3, v0\nv_lshl_add_u32 v13, v11, 3, v13')
    g(f's_mul_i32 s9, s13, 96\ns_add_u32 s9, s9, {WOFF+SLOT(0)}\nv_add_u32 v{VWA}, s9, v13')
    g(f'v_and_b32 v11, 15, v0\nv_lshlrev_b32 v11, 4, v11\nv_lshl_add_u32 v11, v12, 8, v11\nv_lshl_add_u32 v{VH}, v10, 10, v11')
    srd(g,rOUT,pOUT,2621440)
    if o.npre or o.lpre: g(f'v_add_u32 v10, 4096, v{VL}')
    s.dstamp(4,6)
    for r in range(96): g(f'v_mov_b32 v{ACC+r}, 0')
    for b in range(o.cpre):
        s.cpre(2,b)
        if b==0 and o.cpre==3: g.wait_lg(); s.cpre(1,2)
    if o.tord==10: touch()
    g.wait_lg(); s.dstamp(4,4)
    s.gemm1(); s.gemm2(); s.final()
def touch(g): g(f'global_load_dword v252, v251, s[50:51]\nglobal_load_dword v253, v250, s[{pU}:{pU+1}]')
def wtouch(s,b0,nb):
    g=s.g
    g(f's_lshr_b32 s9, s{sWG}, 3\ns_and_b32 s9, s9, 7\ns_lshl_b32 s9, s9, 1\ns_bfe_u32 s10, s{sWAVE}, 0x10001\ns_add_u32 s9, s9, s10\ns_mul_i32 s9, s9, {4*nb}\ns_lshl_b32 s10, s76, 6\ns_add_u32 s9, s9, s10\ns_add_u32 s9, s9, {64*b0}\ns_mul_i32 s10, s{sJ}, 192')
    g(f'v_min_u32 v249, {8*nb-1}, v0\nv_lshrrev_b32 v253, 1, v249\nv_add_u32 v253, s9, v253\nv_subrev_u32 v250, 640, v253\nv_min_u32 v253, v253, v250\nv_mul_u32_u24 v253, 3072, v253')
    g(f'v_and_b32 v249, 1, v249\nv_lshl_add_u32 v253, v249, 7, v253\nv_add_u32 v251, s10, v253\ns_bitcmp0_b32 s{sWAVE}, 0\ns_cselect_b64 s[50:51], s[{pWG}:{pWG+1}], s[{pWU}:{pWU+1}]')
    g.vmem('global_load_dword v252, v251, s[50:51]')
def gemm1(s):
    g=s.g; o=s.o
    def reads(ks,F):
        x=lambda tj:(f'ds_read_b128 {v(F+12+4*tj,4)}, v{VXA+ks} offset:{4096*tj}',('x',F,tj))
        w=lambda fi,h:(f'ds_read_b64_tr_b16 {v(F+4*fi+2*h,2)}, v{VWA} offset:{ks*3072+h*768+fi*32}',('w',F,fi))
        return [x(0),w(0,0),w(0,1),x(1),w(1,0),w(1,1),w(2,0),w(2,1)]
    def mf(F,fi,tj):
        g.wait_lg(('w',F,fi)); g.wait_lg(('x',F,tj)); a=ACC+16*(3*tj+fi)
        g(f'v_mfma_f32_32x32x16_bf16 {v(a,16)}, {v(F+4*fi,4)}, {v(F+12+4*tj,4)}, {v(a,16)}')
    g(f's_mov_b32 s80, 0\ns_mov_b32 s81, 1\ns_mov_b32 s83, {-2*STAGE}')
    g('s_barrier'); s.stamp(1)
    for t,tag in reads(0,FR[0]): g.lds(t,tag)
    st0=list(g.lg)
    order=[(0,0),(0,1),(1,0),(1,1),(2,0),(2,1)]
    NL=8 if o.npre or o.lpre else 10
    def body(it,side):
        if it!=9: g(f's_cmp_eq_u32 s81, 2\ns_cselect_b32 s82, s83, {STAGE}\ns_cselect_b32 s81, -1, s81\ns_add_u32 s81, s81, 1')
        for ks in range(4):
            F=FR[ks&1]; R=reads((ks+1)&3,FR[(ks+1)&1])
            if ks==3 and it is not None:
                if it==9:
                    R=[]
                    if o.prioe: g(f's_setprio {o.prioe}')
                g.wait_lg()
            elif ks==3:
                g.wait_vm(('st',1)); g('s_cmp_eq_u32 s80, 0\ns_cbranch_scc1 G1W'); g.wait_vm(('st',2))
                if o.utw>1: g(f's_cmp_lt_u32 s80, {o.utw}\ns_cbranch_scc1 G1W')
                g.wait_vm('uts')
                if o.prioe and NL==10: g(f's_cmp_lg_u32 s80, 9\ns_cbranch_scc1 G1W\ns_setprio {o.prioe}')
                g.lab('G1W'); g.wait_lg()
                if o.diag and o.diag<4: g(f's_sub_u32 s9, s80, {o.d0}\ns_lshl_b32 s9, s9, 1\ns_sub_u32 s10, s9, 2\ns_cmp_lt_u32 s10, 14\ns_cselect_b32 m0, s9, 16\ns_nop 0\ns_movreld_b32 s84, s100\n'+('s_memtime' if o.clk else 's_memrealtime')+' s[100:101]')
            for k,(fi,tj) in enumerate(order):
                mf(F,fi,tj)
                if ks==3 and k==0: g('s_barrier')
                if k<4:
                    for t,tag in R[2*k:2*k+2]: g.lds(t,tag)
                emit(g,side.get(6*ks+k,[]))
                if k==4 and it!=9:
                    if ks==0: g(f'v_add_u32 v{VXA}, s82, v{VXA}\nv_add_u32 v{VXA+1}, s82, v{VXA+1}')
                    if ks==1: g(f'v_add_u32 v{VXA+2}, s82, v{VXA+2}')
                    if ks==2: g(f'v_add_u32 v{VXA+3}, s82, v{VXA+3}\nv_add_u32 v{VWA}, s82, v{VWA}')
                    if ks==3 and it is None: g(f's_add_u32 s80, s80, 1\ns_cmp_lt_u32 s80, {NL}')
    g.lab('G1'); body(None,{})
    assert g.lg==st0
    g('s_cbranch_scc1 G1')
    if NL==8:
        E=[x for st in range(o.npre) for x in s.wr(st,10)]; P={}
        for k,x in enumerate(E): P.setdefault(o.p0+(o.p1-o.p0)*k//len(E),[]).extend(x)
        E=[x for st in range(o.lpre) for x in s.wd(o.na+st,10,79)]
        assert o.l0>=19
        for k,x in enumerate(E): P.setdefault(o.l0+(o.l1-o.l0)*k//len(E),[]).extend(x)
        body(8,P); body(9,{k-24:x for k,x in P.items()})
    s.stamp(2); s.dstamp(6,0)
    g(f's_lshl_b32 s9, s{sI}, 1\ns_add_u32 s9, s9, s12\ns_mul_i32 s9, s9, 196608')
    g(f's_mul_i32 s10, s{sJ}, 6\ns_mul_i32 s11, s13, 3\ns_add_u32 s10, s10, s11')
    for fi in range(3):
        g(f's_add_u32 s11, s10, {fi}\ns_lshr_b32 s15, s11, 1\ns_lshl_b32 s15, s15, 12\ns_and_b32 s11, s11, 1\ns_lshl_b32 s11, s11, 9\ns_add_u32 s11, s11, s15\ns_add_u32 s{80+fi}, s11, s9')
    for fi,tj in order:
        a=ACC+16*(3*tj+fi)
        for r in range(8): g(f'v_mul_f32 v{a+r}, v{a+r}, v{a+r+8}')
        for r in range(4): g(f'v_cvt_pk_bf16_f32 v{a+r}, v{a+2*r}, v{a+2*r+1}')
        g.vmem(f'buffer_store_dwordx4 {v(a,4)}, v{VH}, s[{rWS}:{rWS+3}], s{80+fi} offen offset:{2048*tj} sc1','hst')
    s.dstamp(6,1); g.wait_lg()
VL=1; VL2=2; VAR=3; VHA=4; A2=8; AF0=88
def AF(o,st): return AF0+20*((st+3)%o.na)
def g2setup(s):
    g=s.g; o=s.o
    g(f's_mul_i32 s67, s{sWAVE}, 10240\ns_lshl_b32 s64, s{sDJ}, 2\ns_add_u32 s64, s64, s{sWAVE}\ns_mul_i32 s64, s64, 61440\ns_add_u32 s65, s64, {WS_WP}')
    g(f'v_lshlrev_b32 v{VL}, 4, v0')
    if o.rt: g(f's_and_b32 s77, s{sTI}, 3\ns_mul_i32 s77, s77, 3')
    else: g(f's_mul_i32 s77, s{sDJ}, {o.r2}\ns_lshr_b32 s77, s77, 1\ns_cmp_ge_u32 s77, 12\ns_cselect_b32 s9, 12, 0\ns_sub_u32 s77, s77, s9')
    g(f's_add_u32 s66, s65, 61440\ns_mul_i32 s9, s77, 5120\ns_add_u32 s64, s65, s9')
    g(f's_add_u32 s79, s64, {5120*o.na}\ns_cmp_ge_u32 s79, s66\ns_cselect_b32 s9, 61440, 0\ns_sub_u32 s79, s79, s9')
    for k in range(o.cpre): emit(g,[nxt(64)])
def cpre(s,part,b=0):
    g=s.g; o=s.o; PD,PA=208,213; base=SLOT(2)+5120*(b&1)
    if part==0:
        for q in range(5): g(f'v_add_u32 v214, {64*q}, v0\nv_mul_u32_u24 v214, 6554, v214\nv_lshrrev_b32 v214, 16, v214\nv_mul_u32_u24 v214, 1120, v214\nv_add_u32 v{PD+q}, v214, v{VL}')
        g(f'v_add_u32 v{PD+4}, 4096, v{PD+4}'); srd(g,20,pWD,1966080)
        g('v_bfe_u32 v214, v0, 2, 2\nv_bfe_u32 v215, v0, 4, 1\nv_lshl_add_u32 v214, v215, 2, v214\nv_lshrrev_b32 v215, 5, v0\nv_lshl_add_u32 v214, v215, 4, v214')
        g(f'v_mul_u32_u24 v214, 160, v214\nv_and_b32 v215, 3, v0\nv_mul_u32_u24 v215, 40, v215\nv_add3_u32 v{PA}, v214, v215, s67')
        g(f's_mul_i32 s24, s{sWAVE}, {12*40960}\ns_mul_i32 s25, s{sDJ}, 160\ns_add_u32 s24, s24, s25')
    elif part==1:
        g(f's_add_u32 s25, s77, {b}\ns_cmp_ge_u32 s25, 12\ns_cselect_b32 s26, 12, 0\ns_sub_u32 s25, s25, s26\ns_add_u32 m0, s67, {base}\ns_mul_i32 s25, s25, 40960\ns_add_u32 s25, s25, s24')
        for q in range(5):
            if q==4: g(f's_add_u32 m0, s67, {base+4096}\ns_nop 0')
            g.vmem(f'buffer_load_dwordx4 v{PD+q}, s[20:23], s25 offen offset:{1024*(q&3)} lds',('cb',b))
    else:
        g.wait_vm(('cb',b))
        for n in range(5):
            for h in range(2): g.lds(f'ds_read_b64_tr_b16 {v(AF(o,b)+4*n+2*h,2)}, v{PA} offset:{base+8*n+1280*h}')
def nxt(p): return ('i',f's_add_u32 s{p}, s{p}, 5120\ns_cmp_eq_u32 s{p}, s66\ns_cselect_b32 s{p}, s65, s{p}')
def wd(s,st,V2=VL2,p=64):
    W1='' if s.o.nsc&1 else ' sc1'
    b=RS((st-s.o.na)&3); t=('wd',st); d=lambda q:('vm',f'buffer_load_dwordx4 v{V2 if q==4 else VL}, s[{rWS}:{rWS+3}], s{p} offen offset:{1024*(q&3)}{W1} lds',t)
    return [[('i',f's_add_u32 m0, s67, {b}\ns_nop 0'),d(0)],[d(1)],[d(2)],[d(3),('i',f's_add_u32 m0, s67, {b+4096}')],[('i','s_nop 0'),d(4),nxt(p)]]
def wr(s,st,V2=VL2,p=64):
    W1='' if s.o.nsc&1 else ' sc1'
    d=lambda q:('vm',f'buffer_load_dwordx4 {v(AF(s.o,st)+4*q,4)}, v{V2 if q==4 else VL}, s[{rWS}:{rWS+3}], s{p} offen offset:{1024*(q&3)}{W1}',('wr',st))
    return [[d(0)],[d(1)],[d(2)],[d(3)],[d(4),nxt(p)]]
def gemm2(s):
    g=s.g; o=s.o; NA=o.na; HB=AF0+20*NA; NH=(256-HB)//16; af=globals()['AF']; AF=lambda st:af(o,st); HF=lambda st,tau:HB+16*(st%NH)+4*tau
    assert NA==6 and o.late and (o.pkv<0 or not(o.npre or o.lpre))
    g(f'v_add_u32 v{VL2}, 4096, v{VL}\nv_add_u32 v{VAR}, s67, v{VL}')
    H1='' if o.nsc&2 else ' sc1'
    wd=lambda st:s.wd(st,VL2,79); wr=lambda st:s.wr(st,VL2,64 if st<NA else 79)
    PF=[st for st in range(NA+4) if not(st<max(o.npre,o.cpre) or NA<=st<NA+o.lpre)]
    def rd(st):
        return [[('lds',f'ds_read_b128 {v(AF(st)+4*n,4)}, v{VAR} offset:{RS((st-NA)&3)+1024*n}',('a',st))] for n in range(5)]
    pf=lambda st:wr(st) if st<NA else wd(st)
    if o.pkv>=0 and o.n1: s.lspin(8,9,L_SY+12,1)
    for st in PF[:o.n1]: emit(g,s.flat(pf(st)))
    g(f's_mul_i32 s14, s{sTI}, 196608\ns_mul_i32 s9, s{sWAVE}, 49152\ns_add_u32 s14, s14, s9')
    g(f's_add_u32 s81, s14, 49152\ns_lshl_b32 s9, s77, 12\ns_add_u32 s80, s14, s9')
    for tau in range(4): g(f's_add_u32 s9, s{sWAVE}, {tau}\ns_and_b32 s9, s9, 3\ns_lshl_b32 s9, s9, 10\nv_add_u32 v{VHA+tau}, s9, v{VL}')
    g.wait_vm('hst'); s.arrive_h(8,9); s.stamp(3); s.dstamp(6,2)
    if o.prioe: g(f's_setprio {o.priop}')
    if o.pkv>=0 and not o.n1: s.lspin(8,9,L_SY+12,1)
    if o.hold:
        g(f'v_mov_b32 v8, {L_SY}\ns_mov_b32 s15, 0'); g.lab('AW'); g('ds_read_b32 v9, v8\ns_waitcnt lgkmcnt(0)\nv_readfirstlane_b32 s9, v9')
        g(f's_add_u32 s15, s15, 1\ns_cmp_gt_u32 s15, {SPIN*8}\ns_cbranch_scc1 AX\ns_cmp_ge_u32 s9, 5\ns_cbranch_scc0 AW'); g.lab('AX')
    sig=f'v_mov_b32 v0, {L_SY+4}\ns_mov_b64 exec, 1\nds_inc_u32 v0, v0\ns_mov_b64 exec, -1'
    for st in PF[o.n1:]:
        if o.hs and st==PF[-o.hs]: g(sig+'\ns_nop 2')
        if o.ad and st==PF[-o.ad]:
            assert o.hs>=o.ad and o.ad<=4
            g(f's_lshl_b32 s9, s{sWAVE}, 2\ns_add_u32 s9, s9, {L_SY+16}\nv_mov_b32 v8, s9\nds_read_b32 v9, v8\ns_waitcnt lgkmcnt(0)\nv_readfirstlane_b32 s9, v9\ns_nop 0\ns_cmp_eq_u32 s9, 1\ns_cbranch_scc1 G2B')
            sv=(list(g.vm),list(g.lg))
        emit(g,s.flat(pf(st)))
        if st==NA-1: s.dstamp(6,3)
    s.dstamp(5,0); s.dstamp(6,4)
    if o.sp==3:
        if not o.hs: g(sig)
        g(f's_lshl_b32 s9, s{sWAVE}, 2\ns_add_u32 s9, s9, {L_SY+16}'); s.lspin(8,9,'s9',1)
    elif o.sp:
        g(f's_lshr_b32 s9, s{sTI}, 1\ns_lshl_b32 s9, s9, 3\ns_add_u32 s9, s9, s{sWAVE}\ns_lshl_b32 s9, s9, 4\ns_add_u32 s9, s9, {FL_H}')
        s.sspin(f's_buffer_load_dwordx4 s[16:19], s[{rWS}:{rWS+3}], s9 glc',range(16,20),1,'s_waitcnt vmcnt(0)\n'*(o.pace>0)+f'ds_read_b32 v9, v{VAR}\ns_waitcnt lgkmcnt(0)\n'*max(o.pace-1,0))
        if o.sp==2: g(f'v_mov_b32 v0, {L_SY+4}\nv_mov_b32 v9, 1\ns_mov_b64 exec, 1\nds_add_u32 v0, v9\ns_mov_b64 exec, -1')
    else:
        g(f's_lshl_b32 s10, s{sWAVE}, 1\ns_add_u32 s10, s10, {L_SY+8}\nv_mov_b32 v8, s10\ns_mov_b32 s15, 0')
        g.lab('HW'); g('ds_read_u16 v9, v8\ns_waitcnt lgkmcnt(0)\nv_readfirstlane_b32 s9, v9')
        g(f's_add_u32 s15, s15, 1\ns_cmp_gt_u32 s15, {SPIN*8}\ns_cbranch_scc1 HX\ns_cmp_eq_u32 s9, 0xffff\ns_cbranch_scc0 HW'); g.lab('HX')
    def tail(D):
        if o.prio: g(f's_setprio {o.prio2}')
        s.stamp(4); s.dstamp(5,1); s.dstamp(6,5)
        def hl(st,tau):
            return [('vm',f'buffer_load_dwordx4 {v(HF(st,tau),4)}, v{VHA+tau}, s[{rWS}:{rWS+3}], s80 offen{H1}',('h',st,tau))]+([('i','s_add_u32 s80, s80, 4096\ns_cmp_eq_u32 s80, s81\ns_cselect_b32 s80, s14, s80')] if tau==3 else [])
        for st in range(NH):
            for tau in range(4): emit(g,hl(st,tau))
        s.dstamp(5,2)
        if not o.bi:
            for st in D: emit(g,s.flat(pf(st)))
            D=[]
        for st in range(12):
            main=[]
            for tau in range(4):
                for n in range(5):
                    a=A2+20*tau+4*n; c=v(a,4) if st else '0'
                    it=[]
                    if n==0: it.append(('wvm',('h',st,tau)))
                    it.append(('i',f'v_mfma_f32_16x16x32_bf16 {v(a,4)}, {v(AF(st)+4*n,4)}, {v(HF(st,tau),4)}, {c}'))
                    if n==4 and st+NH<12: it+=hl(st+NH,tau)
                    main.append(it)
            side=[]; k=st-1+NA
            if o.late:
                if st>=1 and k<12:
                    if k<NA+4: R=rd(k); R[0]=[('wvm',('wd',k))]+R[0]; side+=R
                    else: side+=wr(k)
            else:
                if st>=2 and k+3<12:
                    W=wd(k+3); W[0]=[('wlg',('a',k-1))]+W[0]; side+=W
                if st>=1 and k<12:
                    R=rd(k); R[0]=[('wvm',('wd',k))]+R[0]; side+=R
            if st<len(D): side=pf(D[st])+side
            side=[x for grp in side for x in(grp,[])]
            g.wait_lg(('a',st)); g.wait_vm(('wr',st))
            for k,it in enumerate(main):
                emit(g,it)
                if k<len(side): emit(g,side[k])
            if o.sp>=2 and st==o.yst: g('s_mov_b64 exec, 1'); g.lds('ds_inc_u32 v0, v0 offset:4'); g('s_mov_b64 exec, -1')
            if st in(0,3,7): s.dstamp(5,3+(st+1)//4)
    tail([])
    if o.ad:
        g('s_branch G2E'); e=(list(g.vm),list(g.lg)); g.vm,g.lg=sv; g.lab('G2B'); tail(PF[-o.ad:]); assert e==(g.vm,g.lg),(e,g.vm,g.lg); g.lab('G2E')
    if o.sp>=2: g(f'v_lshrrev_b32 v0, 4, v{VL}')
    s.stamp(5); s.dstamp(5,6); s.dstamp(6,6)
Y=AF0; GG=AF0+10; T_=AF0+12; O_=AF0+20; YA=AF0+32; P_=192
def final(s):
    g=s.g; o=s.o
    g(f'v_add_u32 v128, s67, v{VL}')
    for tau in range(1,4):
        g(f's_sub_u32 s9, s{sWAVE}, {tau}\ns_and_b32 s9, s9, 3\ns_mul_i32 s10, s9, 10240\nv_add_u32 v{1+tau}, s10, v{VL}')
        if tau==3: g('s_nop 0')
        for n in range(5): g.lds(f'ds_write_b128 v128, {v(A2+20*tau+4*n,4)} offset:{RS(tau-1)+n*1024}')
    g(f'v_lshrrev_b32 v129, 4, v0\nv_mul_u32_u24 v129, 20, v129\nv_bfe_u32 v130, v0, 2, 2\nv_add_u32 v130, v129, v130\nv_and_b32 v131, 3, v0')
    g(f's_lshl_b32 s9, s{sWAVE}, 5\ns_add_u32 s10, s9, {L_KS+4608}\nv_lshl_add_u32 v131, v131, 3, s10\nv_lshl_add_u32 v131, v130, 7, v131\ns_movk_i32 s10, 4608')
    for n in range(5): g(f'v_add_u32 v5, {4*n}, v130\nv_lshrrev_b32 v5, 5, v5\nv_mad_u32_u24 v{YA+n}, v5, s10, v131')
    g(f'v_and_b32 v131, 15, v0\ns_lshl_b32 s9, s9, 1\ns_add_u32 s10, s9, {L_G}\nv_lshl_add_u32 v6, v131, 2, s10')
    g(f'v_mul_u32_u24 v131, 1280, v131\nv_lshl_add_u32 v7, v129, 1, v131')
    g(f's_lshl_b32 s9, s{sTI}, 2\ns_add_u32 s9, s9, s{sWAVE}\ns_mul_i32 s9, s9, 20480\ns_mul_i32 s10, s{sDJ}, 160\ns_add_u32 s11, s9, s10')
    g.wait_lg(); g('s_barrier'); s.stamp(6)
    g.lds(f'ds_read_b32 v{GG}, v6','g')
    for n in range(5):
        g.lds(f'ds_read_b64_tr_b16 {v(Y+2*n,2)}, v{YA+n} offset:{512*n}',('y',n))
        for tau in range(1,4): g.lds(f'ds_read_b128 {v(P_+12*n+4*(tau-1),4)}, v{1+tau} offset:{RS(tau-1)+n*1024}',('p',n))
        if n>=2: fin(g,n-2)
    fin(g,3); fin(g,4)
    s.stamp(7); s.dump_stamps((0,[(k,1+k) for k in range(8)])); g('s_endpgm')
def fin(g,n):
    g.wait_lg(('p',n)); a=A2+4*n; O=O_; T=T_; p=P_+12*n
    for e in range(4): g(f'v_add_f32 v{a+e}, v{a+e}, v{p+e}\nv_add_f32 v{p+4+e}, v{p+4+e}, v{p+8+e}')
    for e in range(4):
        g(f'v_lshlrev_b32 v{T+e}, 16, v{Y+2*n+e//2}' if e%2==0 else f'v_and_b32 v{T+e}, 0xffff0000, v{Y+2*n+e//2}')
        g(f'v_add_f32 v{a+e}, v{a+e}, v{p+4+e}')
    for e in range(4): g(f'v_sub_f32 v{T+e}, v{T+e}, v{a+e}')
    for e in range(4): g(f'v_fmac_f32 v{a+e}, v{GG}, v{T+e}')
    g(f'v_cvt_pk_bf16_f32 v{O+2*n}, v{a}, v{a+1}\nv_cvt_pk_bf16_f32 v{O+2*n+1}, v{a+2}, v{a+3}')
    if n in(1,3): g.vmem(f'buffer_store_dwordx4 {v(O+2*n-2,4)}, v7, s[{rOUT}:{rOUT+3}], s11 offen offset:{8*(n-1)}')
    if n==4: g.vmem(f'buffer_store_dwordx2 {v(O+8,2)}, v7, s[{rOUT}:{rOUT+3}], s11 offen offset:32')
```

```python
from consts import *
I=lambda t:('i',t)
SA=10; FA=18; RAW=20; LDT,DSK=32,33; DT,DTL,DTP=34,35,36
B_,C_,ZR,ZI,CC=38,40,42,43,44; E1,E8,E256,E512,E1024=46,50,54,58,62; TM=66; CVT=70; P0=80
BF,AFR,KA=128,160,192
sKS,sUB,sT0,sT1=34,35,50,51
def cmul(s,d,a,b):
    if s.o.pk:
        return [I(f'v_pk_mul_f32 {v(d,2)}, {v(a,2)}, {v(b,2)} op_sel:[0,0] op_sel_hi:[0,1]'),
                I(f'v_pk_fma_f32 {v(d,2)}, {v(a,2)}, {v(b,2)}, {v(d,2)} op_sel:[1,1,0] op_sel_hi:[1,0,1] neg_lo:[0,1,0]')]
    return [I(f'v_mul_f32 v{d}, v{a}, v{b}'),I(f'v_mul_f32 v{d+1}, v{a}, v{b+1}'),
            I(f'v_fma_f32 v{d}, -v{a+1}, v{b+1}, v{d}'),I(f'v_fmac_f32 v{d+1}, v{a+1}, v{b}')]
def Ex(dst,x,TM,ZR):
    L=[]
    if x!=1:
        L+=[I(f'v_mul_f32 v{TM}, {hex(fb(x))}, v{ZR}'),I(f'v_mul_f32 v{TM+1}, {hex(fb(x))}, v{ZR+1}'),I(f'v_fract_f32 v{TM+1}, v{TM+1}')]; m=TM
    else: L+=[I(f'v_fract_f32 v{TM+1}, v{ZR+1}')]; m=ZR
    L+=[I(f'v_exp_f32 v{TM}, v{m}'),I(f'v_cos_f32 v{dst}, v{TM+1}'),I(f'v_sin_f32 v{dst+1}, v{TM+1}'),
        I(f'v_mul_f32 v{dst}, v{dst}, v{TM}'),I(f'v_mul_f32 v{dst+1}, v{dst+1}, v{TM}')]
    return L
def fb(x):
    import struct; return struct.unpack('<I',struct.pack('<f',x))[0]
class Rows:
    def __init__(s,L): s.L=L; s.pend={}
    def put(s,row,r):
        k=row>>2
        if k in s.pend:
            r0,row0=s.pend.pop(k)
            s.L.append(('lds',f'ds_write2_b32 v{SA+k}, v{r0}, v{r} offset0:{68*(row0&3)} offset1:{68*(row&3)}'))
        else: s.pend[k]=(r,row)
    def flush(s):
        for k,(r,row) in s.pend.items(): s.L.append(('lds',f'ds_write_b32 v{SA+k}, v{r} offset:{272*(row&3)}'))
        s.pend={}
CH=50; HH=54; ONE=65; KSC=37; EA,EB=68,70; RW=80
def unp(dst,a,ch): return I([f'v_lshlrev_b32 v{dst}, 16, v{RAW+a}',f'v_and_b32 v{dst}, 0xffff0000, v{RAW+a}',f'v_lshlrev_b32 v{dst}, 16, v{RAW+6+a}'][ch])
def hmul(d,a,b,conj):
    n1,n2=(' neg_hi:[0,1]','') if conj else ('',' neg_lo:[0,1,0]')
    return [I(f'v_pk_mul_f16 v{d}, v{a}, v{b} op_sel:[0,0] op_sel_hi:[0,1]{n1}'),I(f'v_pk_fma_f16 v{d}, v{a}, v{b}, v{d} op_sel:[1,1,0] op_sel_hi:[1,0,1]{n2}')]
def kgen_pre(s):
    L=[('wvm','par'),I(f'v_lshlrev_b32 v{LDT}, 16, v{LDT}'),I(f'v_mul_f32 v{LDT}, {hex(fb(1.4426950408889634))}, v{LDT}'),I(f'v_exp_f32 v{LDT}, v{LDT}'),I(f'v_mov_b32 v{ONE}, 0x3c00'),
       I(f'v_cvt_pk_bf16_f32 v{DT}, v{LDT}, v{LDT}'),I(f'v_lshlrev_b32 v{DT}, 16, v{DT}'),
       I(f'v_mul_f32 v{DTL}, {hex(fb(1.4426950408889634))}, v{DT}'),I(f'v_mul_f32 v{DTP}, {hex(fb(0.15915494309189535))}, v{DT}')]
    for ch in range(3):
        L+=[unp(d,2+a,ch) for a,d in enumerate([B_,B_+1,C_,C_+1])]+s.cmul(CC+2*ch,C_,B_)
        L.append(I(f'v_max3_f32 v{TM}, |v{CC+2*ch}|, |v{CC+2*ch+1}|, '+(f'v{TM}' if ch else '0')))
    t=''
    for c in['quad_perm:[1,0,3,2]','quad_perm:[2,3,0,1]','row_half_mirror','row_mirror']: t+=f's_nop 1\nv_max_f32_dpp v{TM}, v{TM}, v{TM} {c} row_mask:0xf bank_mask:0xf\n'
    t+=f's_nop 0\nv_readlane_b32 s9, v{TM}, 0\nv_readlane_b32 s10, v{TM}, 16\nv_readlane_b32 s11, v{TM}, 32\nv_readlane_b32 s15, v{TM}, 48\n'
    t+='s_max_u32 s9, s9, s10\ns_max_u32 s11, s11, s15\ns_max_u32 s9, s9, s11\ns_lshr_b32 s9, s9, 23\ns_max_u32 s9, s9, 11\ns_min_u32 s9, s9, 253\n'
    t+=f's_sub_u32 s10, 264, s9\ns_lshl_b32 s10, s10, 23\ns_sub_u32 s9, s9, 10\ns_lshl_b32 s9, s9, 23\nv_mul_f32 v{KSC}, s9, v{DT}\n'
    for k in range(6): t+=f'v_mul_f32 v{CC+k}, s10, v{CC+k}\n'
    L.append(I(t))
    for ch in range(3): L+=[unp(ZS[ch],0,ch),unp(ZS[ch]+1,1,ch),I(f'v_mul_f32 v{ZS[ch]}, v{ZS[ch]}, v{DTL}'),I(f'v_mul_f32 v{ZS[ch]+1}, v{ZS[ch]+1}, v{DTP}')]
    for ch in range(3): L.append(I(f'v_cvt_pk_f16_f32 v{CH+ch}, v{CC+2*ch}, -v{CC+2*ch+1}'))
    return L
ZS=[42,112,114]
def units(L,R,U,ilv):
    i=0
    while i<len(U):
        u=U[i]
        if u[0] is None: R.put(u[4],u[1]); i+=1; continue
        grp=[u]
        while ilv and len(grp)<=ilv and i+len(grp)<len(U):
            n=U[i+len(grp)]
            if n[0] is None or n[1] in [x[0] for x in grp]: break
            grp.append(n)
        ms=[hmul(*x[:4]) for x in grp]
        L+=[m[0] for m in ms]+[m[1] for m in ms]
        for x in grp:
            if x[4] is not None: R.put(x[4],x[0])
        i+=len(grp)
def kgen_chunk(s,ch):
    h=lambda x:HH+x.bit_length()-1; C2=[]
    for x0,n,a,b,t in[(1,4,68,70,66),(32,5,74,76,72)]:
        c=Ex(a,x0,t,ZS[ch]); c.append(I(f'v_cvt_pk_f16_f32 v{h(x0)}, v{a}, v{a+1}'))
        for k in range(1,n+1):
            c+=[I(f'v_mul_f32 v{t}, v{a+1}, v{a+1}'),I(f'v_add_f32 v{t+1}, v{a}, v{a}'),I(f'v_fma_f32 v{b}, v{a}, v{a}, -v{t}'),I(f'v_mul_f32 v{b+1}, v{t+1}, v{a+1}'),
                I(f'v_cvt_pk_f16_f32 v{h(x0<<k)}, v{b}, v{b+1}')]; a,b=b,a
        C2.append(c)
    H=merge(C2[1],[[x] for x in C2[0]]) if s.o.ilv else C2[0]+C2[1]
    R=Rows(H); rb={0:ONE}; U=[(None,ONE,0,0,0)]
    for j in range(1,32):
        hb=1<<(j.bit_length()-1)
        if j==hb: rb[j]=h(8*j); U.append((None,rb[j],0,0,j))
        else: rb[j]=RW+j; U.append((RW+j,rb[j-hb],h(8*hb),0,j))
    units(H,R,U,s.o.ilv)
    T=[]
    for k in range(8): T.append(('lds',f'ds_read_b128 {v(BF+4*k,4)}, v{FA} offset:{32*k}',('b',k)))
    R=Rows(T); row=lambda half,r:8*(r//4)+4*half+r%4
    P={0:CH+ch}; nx=[RW]; U=[(None,P[0],0,0,row(0,0))]
    def mk(x,y,r):
        d=nx[0]; nx[0]+=1; U.append((d,P[x-y],h(y),1,r)); P[x]=d
    for hi in range(1,8): mk(hi,1<<(hi.bit_length()-1),row(0,hi))
    mk(8,8,None)
    for n,k in enumerate([0,2,4,6,8]): mk(256+k,256,row(0,8+n))
    for n,k in enumerate([0,4,8]): mk(512+k,512,row(0,13+n))
    for n,k in enumerate([0,4,8]): mk(768+k,512,row(1,n))
    for m in range(4):
        for n,k in enumerate([0,8]): mk(1024+256*m+k,1024,row(1,3+2*m+n))
    units(T,R,U,s.o.ilv); R.flush()
    for k in range(8): T.append(('lds',f'ds_read_b128 {v(AFR+4*k,4)}, v{FA} offset:{32*k}',('a',k)))
    M=[]
    for k in range(8):
        c=v(KA,16) if (ch or k or s.o.kloop) else '0'
        t=f'v_mfma_f32_32x32x16_f16 {v(KA,16)}, {v(AFR+4*k,4)}, {v(BF+4*k,4)}, {c}'
        if s.o.mprio: t=f's_setprio 3\n{t}\ns_setprio {s.o.priox}'
        M.append([('wlg',('a',k)),I(t)])
    return H,T,M
def kgen_expand(s):
    L=[]; VE,VZ,t=10,11,12; X=BF; cv=lambda d,a,b:L.append(I(f'v_cvt_pk_bf16_f32 v{d}, v{a}, v{b}'))
    L+=[I(f'v_and_b32 v{t}, 31, v0'),I(f'v_lshlrev_b32 v{t}, 4, v{t}'),I(f's_add_u32 s9, s{sKS}, 496'),I(f'v_sub_u32 v{VE}, s9, v{t}'),
        I(f'v_add_u32 v{VZ}, s{sKS}, v{t}'),I(f'v_and_b32 v{t}, 1, v0'),I(f'v_cmp_eq_u32 vcc, 1, v{t}'),I(f'v_lshlrev_b32 v{DSK}, 16, v{DSK}')]
    for k in range(4): L.append(I(f'v_mov_b32 v{X+k}, 0'))
    L.append(I('s_nop 0'))
    for k in range(16): L.append(I(f'v_mul_f32 v{KA+k}, v{KA+k}, v{KSC}'))
    L.append(I(f's_mov_b64 exec, 1\nv_add_f32 v{KA}, v{KA}, v{DSK}\ns_mov_b32 exec_lo, -1'))
    L+=[('lds',f'ds_write_b128 v{VZ}, {v(X,4)} offset:4096'),I('s_mov_b32 exec_hi, -1')]
    n=[1]
    def chunk(e,base,pre=None):
        x=X+4*n[0]; n[0]+=1; h='hi' if base<768 else 'lo'; L.append(('cut',))
        if pre: L.append(I(pre))
        for k in range(4): cv(x+k,e[7-2*k],e[6-2*k])
        L.extend([I(f's_mov_b32 exec_{h}, 0'),('lds',f'ds_write_b128 v{VE}, {v(x,4)} offset:{2*(1792-base)}'),I(f's_mov_b32 exec_{h}, -1')])
    a=lambda r:KA+r
    chunk([a(r) for r in range(8)],0)
    chunk([a(8+k) for k in[0,0,1,2,2,2,3,4]],256)
    chunk([a(13+k) for k in[0,0,0,1,1,1,2,2]],512)
    chunk([a(k) for k in[0,0,0,1,1,1,2,2]],768)
    for m in range(4):
        z0,z8=a(3+2*m),a(4+2*m)
        chunk([z0,z0,z0,z0,t,z8,z8,z8],1024+256*m,f'v_cndmask_b32 v{t}, v{z0}, v{z8}, vcc')
    return L
UA,UO,UD=244,248,224
def xpose(s,part):
    g=s.g
    if part==0:
        g(f's_lshl_b32 s10, s14, 12\ns_add_u32 s10, s10, {SLOT(0)}')
        g('v_lshrrev_b32 v240, 4, v0\nv_bfe_u32 v241, v0, 2, 2\nv_lshl_add_u32 v241, v240, 3, v241\nv_lshlrev_b32 v241, 7, v241\nv_bfe_u32 v242, v0, 1, 1\nv_bfe_u32 v243, v0, 3, 1\nv_xor_b32 v242, v242, v243')
        g('v_bfe_u32 v243, v0, 4, 1\nv_lshl_add_u32 v242, v243, 2, v242\nv_lshl_add_u32 v241, v242, 4, v241\nv_and_b32 v242, 1, v0\nv_lshl_add_u32 v241, v242, 3, v241')
        for m in range(4): g(f'v_xor_b32 v242, {32*m}, v241\nv_add_u32 v{UA+m}, s10, v242')
        g(f'v_and_b32 v242, 15, v0\nv_mul_u32_u24 v242, {ROWS}, v242\nv_lshl_add_u32 v242, v240, 4, v242\ns_cmp_lt_u32 s{sJ}, 10\ns_cselect_b32 s9, 0, 0x40000000\nv_add_u32 v{UO}, s9, v242')
        g(f's_mul_i32 s9, s76, {64*ROWS}\ns_lshl_b32 s10, s{sI}, 8\ns_add_u32 s9, s9, s10\ns_lshl_b32 s10, s14, 6\ns_add_u32 s9, s9, s10')
        return
    for db in range(4):
        for h in range(2): g.lds(f'ds_read_b64_tr_b16 {v(UD+4*db+2*h,2)}, v{UA+(db^h)} offset:{512*h}',('ut',db))
    for db in range(4):
        g(f's_add_u32 s10, s9, {WS_UT+16*db*ROWS}'); g.wait_lg(('ut',db))
        g.vmem(f'buffer_store_dwordx4 {v(UD+4*db,4)}, v{UO}, s[{rWS}:{rWS+3}], s10 offen sc1','uts')
def pack(s,part,x3):
    g=s.g; PD,PA,PF=200,206,224; base=L_TMP if x3 else L_KS+2*8704
    if part==0:
        g(f's_lshr_b32 s9, s{sP}, 1\ns_mul_i32 s77, s9, 3\n'+(f's_and_b32 s9, s{sP}, 1\ns_add_u32 s77, s77, s9' if x3 else 's_add_u32 s77, s77, 2'))
        g(f's_lshr_b32 s10, s{sP}, 5\ns_mul_i32 s9, s10, 48\ns_sub_u32 s9, s77, s9\ns_mul_i32 s9, s9, 40960\ns_mul_i32 s10, s10, 160\ns_add_u32 s78, s9, s10\nv_lshlrev_b32 v1, 4, v0')
        for q in range(5):
            g(f'v_add_u32 v9, {64*q}, v0\nv_mul_u32_u24 v9, 6554, v9\nv_lshrrev_b32 v9, 16, v9\nv_mul_u32_u24 v9, 1120, v9\nv_add_u32 v{PD+q}, v9, v1')
        g(f's_mov_b32 m0, {base}\nv_add_u32 v{PD+4}, 4096, v{PD+4}\ns_waitcnt lgkmcnt(0)'); srd(g,rWD,pWD,1966080)
        for q in range(5):
            if q==4: g(f's_mov_b32 m0, {base+4096}\ns_nop 0')
            g.vmem(f'buffer_load_dwordx4 v{PD+q}, s[{rWD}:{rWD+3}], s78 offen offset:{1024*(q&3)} lds','blk')
        g(f's_mul_i32 s78, s77, 5120\ns_add_u32 s78, s78, {WS_WP}')
        return
    g('v_bfe_u32 v200, v0, 2, 2\nv_bfe_u32 v201, v0, 4, 1\nv_lshl_add_u32 v200, v201, 2, v200\nv_lshrrev_b32 v201, 5, v0\nv_lshl_add_u32 v200, v201, 4, v200')
    g(f'v_mul_u32_u24 v200, 160, v200\nv_and_b32 v201, 3, v0\nv_mul_u32_u24 v201, 40, v201\ns_mov_b32 s9, {base}\nv_add3_u32 v{PA}, v200, v201, s9\nv_add_u32 v201, 4096, v1')
    g.wait_vm('blk')
    for n in range(5):
        for h in range(2): g.lds(f'ds_read_b64_tr_b16 {v(PF+4*n+2*h,2)}, v{PA} offset:{8*n+1280*h}',('pf',n))
    for n in range(5):
        g.wait_lg(('pf',n)); g.vmem(f'buffer_store_dwordx4 {v(PF+4*n,4)}, v{201 if n==4 else 1}, s[{rWS}:{rWS+3}], s78 offen offset:{1024*(n&3)} sc1','pk')
def xloop(s,role,pre=None,post=None,extra={}):
    g=s.g; o=s.o
    if role!='3' and o.twd==2:
        g(f's_mul_i32 s9, s{sWG}, 3\ns_add_u32 s9, s9, s14\ns_mul_i32 s9, s9, 2560\ns_add_u32 s72, s{pWD}, s9\ns_addc_u32 s73, s{pWD+1}, 0')
    if role!='3' and o.twd==3:
        g(f's_lshr_b32 s9, s{sWG}, 3\ns_mul_i32 s9, s9, 3\ns_add_u32 s9, s9, s14\ns_mul_i32 s9, s9, 20480\ns_lshr_b32 s10, s{sDJ}, 2\ns_mul_i32 s10, s10, 640\ns_add_u32 s9, s9, s10')
        g(f's_add_u32 s64, s{pWD}, s9\ns_addc_u32 s65, s{pWD+1}, 0\ns_and_b32 s66, s{sWG}, 6\ns_mul_i32 s66, s66, 2560')
    for iv in range(9):
        if pre: pre(iv)
        st=s.stage(iv+2,role=='3') if o.np-2<=iv<=7 else []
        ex=extra.get(iv,[])
        if ex and ex[0]=='pc':
            st=st+[[]]*20; st=[grp+ex[1][k-o.xo:k-o.xo+1]*(k>=o.xo) for k,grp in enumerate(st)]; ex=[]
        emit(g,merge(ex,st,0,len(ex)*o.dfrac//100) if ex else s.flat(st))
        if iv==o.tx: s.wtouch(o.txb,10-o.txb)
        if role!='3' and o.twd==2 and 0<=iv-o.tw0<o.twn:
            for k in range(40*(iv-o.tw0)//o.twn,40*(iv+1-o.tw0)//o.twn): g(f's_load_dword s74, s[72:73], {64*k}')
        if role!='K' and iv==o.pkv: s.pack(0,role=='3')
        if role!='K' and iv==o.pk1 and o.pkv>=0: s.pack(1,role=='3')
        if role!='3' and o.twd==3 and iv>=1:
            for k in range(10): g(f's_load_dword s67, s[64:65], s66 offset:{1280*(k//5)+128*(k%5)}')
            g('s_add_u32 s66, s66, 2560\ns_cmp_eq_u32 s66, 20480\ns_cselect_b32 s66, 0, s66')
        if post: post(iv)
        s.dstamp(1,iv); g.wait_vm(('st',iv+1))
        if iv==(o.utw if o.pkv<0 else o.pk1+1): g.wait_vm('pk')
        if post: post(100+iv)
        s.dstamp(2,iv); g('s_barrier'); s.dstamp(3,iv)
    if pre: pre(9)
    emit(g,extra.get(9,[0,[]])[1])
def xpaths(s):
    g=s.g; o=s.o; g.reset()
    if o.priox: g(f's_setprio {o.priox}')
    g(f's_and_b32 s14, s{sWAVE}, 3\ns_mul_i32 s80, s14, 8704\ns_add_u32 s80, s80, {L_KS+4608}')
    if o.bal: g(f's_lshr_b32 s9, s{sWG}, {3*o.bal}\ns_xor_b32 s9, s9, s{sWG}\ns_and_b32 s9, s9, 1\ns_mul_i32 s9, s9, {1+8**o.bal}\ns_xor_b32 s{sP}, s9, s{sWG}')
    else: g(f's_mov_b32 s{sP}, s{sWG}')
    g(f's_cmp_eq_u32 s14, 3\ns_cbranch_scc1 X3PATH\ns_and_b32 s9, s{sP}, 1\ns_add_u32 s10, s9, s14\ns_cmp_eq_u32 s10, 3\ns_cbranch_scc1 LOADONLY')
    g(f's_lshr_b32 s10, s{sP}, 1\ns_mul_i32 s10, s10, 5\ns_mul_i32 s9, s9, 3\ns_add_u32 s10, s10, s9\ns_add_u32 s{sD}, s10, s14')
    g(f's_mul_i32 s9, s{sD}, 384\nv_lshl_add_u32 v14, v0, 2, s9\nv_lshl_add_u32 v15, v0, 1, s9\ns_lshl_b32 s9, s{sD}, 1\nv_mov_b32 v16, s9')
    g('s_waitcnt lgkmcnt(0)')
    g.vmem(f'global_load_ushort v{LDT}, v16, s[{pLDT}:{pLDT+1}]','par')
    for a,p in enumerate([pAR,pAI,pBR,pBI,pCR,pCI]):
        g.vmem(f'global_load_dword v{RAW+a}, v14, s[{p}:{p+1}]','par'); g.vmem(f'global_load_ushort v{RAW+6+a}, v15, s[{p}:{p+1}] offset:256','par')
    g.vmem(f'global_load_ushort v{DSK}, v16, s[{pDS}:{pDS+1}]','par')
    s.loader_setup()
    g(f's_sub_u32 s{sKS}, s80, 4608\ns_mul_i32 s{sUB}, s14, 16640\ns_add_u32 s{sUB}, s{sUB}, {L_U}')
    g(f'v_lshl_add_u32 v{SA}, v0, 2, s{sKS}')
    for k in range(1,8): g(f'v_add_u32 v{SA+k}, {1088*k}, v{SA}')
    g(f'v_and_b32 v{FA}, 31, v0\nv_mul_u32_u24 v{FA}, 272, v{FA}\nv_lshrrev_b32 v19, 5, v0\nv_lshlrev_b32 v19, 4, v19\nv_add3_u32 v{FA}, v{FA}, v19, s{sKS}')
    if o.diag==4: s.dstamp(4,2); g.wait_vm('par'); s.dstamp(4,3)
    main=kgen_pre(s); M=None
    if o.kloop:
        H,T,M=s.kgen_chunk(0)
        for k in range(16): g(f'v_mov_b32 v{KA+k}, 0')
        emit(g,main); g('s_mov_b32 s15, 0\ns_cmp_lg_u32 s15, 0'); g.lab('KL')
        Mb=[[m[0],I(f's_cbranch_scc0 KM{k}'),m[1],I(f'KM{k}:')] for k,m in enumerate(M)]
        body=merge(H,Mb,4,4+8*o.mgap)+T
        t=G(); emit(t,body); g.lg=list(t.lg); emit(g,body); assert g.lg==t.lg
        g(f'v_mov_b32 v42, v112\nv_mov_b32 v43, v113\nv_mov_b32 v112, v114\nv_mov_b32 v113, v115\nv_mov_b32 v{CH}, v{CH+1}\nv_mov_b32 v{CH+1}, v{CH+2}')
        g('s_add_u32 s15, s15, 1\ns_cmp_lt_u32 s15, 3\ns_cbranch_scc1 KL'); main=[]
    else:
      for ch in range(3):
        H,T,M2=s.kgen_chunk(ch)
        if M: H=merge(H,M,4,4+8*o.mgap)
        main+=H+T; M=M2
    main+=[it for m in M for it in m]
    if o.nokgen: main=[I('s_nop 0')]*20
    n0=len(main)*o.kpre//100; rest=main[n0:]; extra={}
    for k in range(o.kiv): extra[k]=rest[len(rest)*k//o.kiv:len(rest)*(k+1)//o.kiv]
    emit(g,main[:n0]); s.dstamp(4,4); g('s_barrier'); s.stamp(1); s.dstamp(4,5)
    post=None; E=s.kgen_expand(); x0=max(o.kiv,o.xiv) if rest else o.xiv
    cut=[0]+[k for k,it in enumerate(E) if it[0]=='cut']+[len(E)]
    Pc=[('blk',[it for it in E[cut[k]:cut[k+1]] if it[0]!='cut']) for k in range(len(cut)-1)]
    extra[x0]=('pc',Pc[:o.xa]); Pc=Pc[o.xa:]
    while Pc: x0+=1; extra[x0]=('pc',Pc[:o.xb]); Pc=Pc[o.xb:]
    assert x0<=9
    def pre(iv):
        if iv<8: return
        if iv==8: g(f's_mul_i32 s{sT0}, s{sD}, {ROWS}\nv_lshlrev_b32 v9, 4, v0')
        if iv==9: s.stamp(2)
        n=[0,o.n8,o.n8+o.n9,4]
        for c in range(n[iv-8],n[iv-7]):
            g(f's_add_u32 m0, s{sUB}, {32+4160*c}\ns_add_u32 s{sT1}, s{sT0}, {WS_UT-6+2*c}')
            for q in range(4): g.vmem(f'buffer_load_dwordx4 v9, s[{rWS}:{rWS+3}], s{sT1} offen offset:{1024*q} sc1 lds','u')
    s.upre=pre
    s.xloop('K',pre,post,extra)
    s.conv()
    g.lab('LOADONLY'); g.reset()
    if o.pkv<0: s.pack(0,0)
    s.loader_setup()
    if o.pkv<0: s.pack(1,0)
    g('s_barrier'); s.xloop('L'); g('s_endpgm')
    g.lab('X3PATH'); g.reset(); s.x3path()
def conv(s):
    g=s.g; o=s.o; VU,VK,VS=2,3,4; CA=32; UF=[64,128]; KF=[96,160]
    g(f'v_and_b32 v5, 3, v0\nv_mul_u32_u24 v5, 4160, v5\nv_bfe_u32 v6, v0, 2, 2\nv_lshl_add_u32 v5, v6, 3, v5\nv_lshrrev_b32 v7, 4, v0\nv_lshl_add_u32 v5, v7, 4, v5')
    g(f's_add_u32 s9, s{sUB}, 8\nv_add_u32 v{VU}, s9, v5\nv_and_b32 v8, 15, v0\nv_lshlrev_b32 v5, 5, v8\nv_lshlrev_b32 v6, 4, v7\nv_sub_u32 v6, v6, v5')
    g(f's_add_u32 s10, s{sKS}, 480\nv_add_u32 v{VK}, s10, v6')
    g(f'v_bfe_u32 v6, v0, 4, 1\nv_lshl_add_u32 v5, v6, 9, v5\nv_lshrrev_b32 v6, 5, v0\nv_lshl_add_u32 v{VS}, v6, 4, v5')
    g(f'v_mul_u32_u24 v5, 4160, v7\nv_lshl_add_u32 v5, v8, 1, v5\nv_add_u32 v5, s9, v5\nv_add_u32 v6, v7, v8\nv_cmp_gt_u32 vcc, 15, v6')
    for r in range(32): g(f'v_mov_b32 v{CA+r}, 0')
    g('s_barrier'); s.stamp(3); s.upre(10)
    g(f's_add_u32 s{sT0}, s{sT0}, {WS_YT}\ns_mov_b32 s15, 0')
    if o.prio: g(f's_setprio {o.prio3}')
    g.wait_vm('u'); s.stamp(4)
    g(f's_mov_b64 exec, vcc\nds_write_b16 v5, v{CA}\ns_mov_b64 exec, -1')
    def reads(b,off):
        R=[]
        for p in range(8):
            R.append(f'ds_read_b128 {v(KF[b]+4*p,4)}, v{VK} offset:{3584-512*p+off}')
            R+=[f'ds_read_b64 {v(UF[b]+4*p+2*h,2)}, v{VU} offset:{512*p+8*h+off}' for h in range(2)]
        return R
    rem={q:[(p,q-p) for p in range(q+1)] for q in range(8)}; order=[]; last=[]
    while any(rem.values()):
        c=[q for q in rem if rem[q] and q not in last[-3:]] or [q for q in rem if rem[q] and q not in last[-2:]] or [q for q in rem if rem[q]]
        q=max(c,key=lambda q:len(rem[q])); order.append((q,)+rem[q].pop(0)); last.append(q)
    for t in reads(0,0): g(t)
    g.lab('CV')
    for b in range(2):
        R=reads(1-b,64 if b==0 else 0); g('s_waitcnt lgkmcnt(0)')
        for k,(q,p,m) in enumerate(order):
            g(f'v_mfma_f32_16x16x32_bf16 {v(CA+4*q,4)}, {v(UF[b]+4*p,4)}, {v(KF[b]+4*m,4)}, {v(CA+4*q,4)}')
            if k<24: g(R[k])
            if k==26 and b==0: g(f'v_add_u32 v{VU}, 128, v{VU}\nv_add_u32 v{VK}, 128, v{VK}')
            if k==34 and b==1: g(f's_add_u32 s15, s15, 1\ns_cmp_lt_u32 s15, {1 if o.noconv else 4}')
    g('s_cbranch_scc1 CV'); s.stamp(5)
    g(f's_lshr_b32 s9, s{sD}, 4\ns_lshl_b32 s9, s9, 7\ns_and_b32 s10, s{sD}, 15\ns_lshl_b32 s10, s10, {0 if o.sp else 2}\ns_add_u32 s9, s9, s10\ns_add_u32 s9, s9, {FL_Y}\nv_mov_b32 v5, s9\nv_mov_b32 v6, 1')
    for q in range(8):
        for h in range(2): g(f'v_cvt_pk_bf16_f32 v{10+2*q+h}, v{CA+4*q+2*h}, v{CA+4*q+2*h+1}')
    for q in range(0,8,2):
        x=10+2*q; g(f'v_permlane16_swap_b32 v{x}, v{x+2}\nv_permlane16_swap_b32 v{x+1}, v{x+3}')
        g(f'buffer_store_dwordx4 {v(x,4)}, v{VS}, s[{rWS}:{rWS+3}], s{sT0} offen offset:{512*q} sc1')
    g(f's_waitcnt vmcnt(0)\ns_mov_b64 exec, 1\nbuffer_store_{"byte" if o.sp else "dword"} v6, v5, s[{rWS}:{rWS+3}], 0 offen sc1')
    s.stamp(6); s.dump_stamps(); g('s_endpgm')
def x3path(s):
    g=s.g; o=s.o; M=f's[{sKS}:{sKS+1}]'
    if o.pkv<0: s.pack(0,1)
    s.loader_setup()
    srd(g,rGW,pGW,1280); g(f'v_lshlrev_b32 v9, 4, v0\ns_mov_b32 m0, {L_GW}')
    for k in range(4): g(f'v_mov_b32 v{28+k}, 0')
    for q in range(2): g.vmem(f'buffer_load_dwordx4 v9, s[{rGW}:{rGW+3}], 0 offen offset:{1024*q} lds','gw')
    if o.tlb:
        srd(g,rWD,pOUT,2621440); g(f'v_min_u32 v40, {(WS_END>>o.tlb)-1}, v0\nv_lshlrev_b32 v40, {o.tlb}, v40\nv_lshlrev_b32 v41, {o.tlb}, v0')
        g.vmem(f'buffer_load_dword v40, v40, s[{rWS}:{rWS+3}], 0 offen','tl'); g.vmem(f'buffer_load_dword v41, v41, s[{rWD}:{rWD+3}], 0 offen','tl')
    g(f's_cmp_eq_u32 s{sWG}, 0\ns_cbranch_scc0 NOINIT')
    for k in range(10):
        if k%4==0: g(f's_mov_b32 s9, {WS_FL+1024*k}')
        g(f'buffer_store_dwordx4 v[28:31], v9, s[{rWS}:{rWS+3}], s9 offen offset:{1024*(k%4)} sc1')
    g(f's_waitcnt vmcnt(0)\nv_mov_b32 v11, 1\ns_mov_b64 exec, 1\nglobal_store_dword v31, v11, s[{pDBG}:{pDBG+1}] sc1\ns_mov_b64 exec, -1')
    g.lab('NOINIT')
    g(f'v_mov_b32 v10, {L_SY}\nds_write_b128 v10, v[28:31]\nds_write_b128 v10, v[28:31] offset:16')
    g(f's_and_b32 s9, s{sJ}, 1\ns_lshl_b32 s9, s9, 2\nv_lshrrev_b32 v20, 4, v0\nv_add_u32 v21, s9, v20\nv_and_b32 v22, 7, v0\nv_xor_b32 v21, v21, v22')
    g(f'v_lshrrev_b32 v18, 3, v0\ns_lshl_b32 s9, s{sJ}, 10\nv_lshlrev_b32 v23, 7, v18\nv_lshl_add_u32 v23, v21, 4, v23\nv_add_u32 v10, s9, v23\nv_add_u32 v11, {2*STAGE}, v10')
    g(f'v_lshlrev_b32 v12, 4, v22\nv_add_u32 v12, {L_GW}, v12\ns_lshl_b32 s79, s76, 7')
    s.dstamp(4,3)
    if o.pkv<0: s.pack(1,1)
    g.wait_lg(); g.wait_vm('gw'); s.dstamp(4,4); g('s_barrier'); s.stamp(1); s.dstamp(4,5)
    def gate(st): g(f'v_add_u32 v13, s79, v12\nds_read_b128 v[20:23], v{11 if SLOT(st)==2*STAGE else 10} offset:{SLOT(st)%(2*STAGE)}\nds_read_b128 v[24:27], v13\ns_add_u32 s79, s79, 128\ns_cmp_eq_u32 s79, 1280\ns_cselect_b32 s79, 0, s79')
    def dots():
        g.wait_lg()
        for k in range(4):
            g(f'v_lshlrev_b32 v28, 16, v{20+k}\nv_lshlrev_b32 v29, 16, v{24+k}\nv_and_b32 v{20+k}, 0xffff0000, v{20+k}\nv_and_b32 v{24+k}, 0xffff0000, v{24+k}')
            g(f'v_fmac_f32 v30, v28, v29\nv_fmac_f32 v30, v{20+k}, v{24+k}')
    def pre(iv):
        if iv==9: return
        gate(iv)
        if iv==o.utw+1:
            g.wait_vm('go'); g('v_readfirstlane_b32 s9, v32\ns_nop 0\ns_cmp_eq_u32 s9, 1\ns_cbranch_scc1 GOOK')
            s.spin(f'global_load_dword v32, v31, s[{pDBG}:{pDBG+1}] sc1','v_cmp_eq_u32 vcc, 1, v32','-1'); g.lab('GOOK')
            g(f's_lshl_b32 s9, s76, 7\ns_lshl_b32 s10, s{sI}, 2\ns_add_u32 s9, s9, s10\ns_add_u32 s9, s9, {FL_UT}\ns_cmp_lt_u32 s{sJ}, 10\ns_cselect_b32 s9, s9, 0x40000000')
            g(f's_lshl_b32 s10, s{sP}, 2\ns_add_u32 s10, s10, {FL_WP}\nv_mov_b32 v19, s9\ns_mov_b64 exec, 1\nv_mov_b32 v19, s10\ns_mov_b64 exec, {3 if o.pkv<0 else 2}')
            g.vmem(f'buffer_store_dword v32, v19, s[{rWS}:{rWS+3}], 0 offen sc1'); g('s_mov_b64 exec, -1')
        if o.pkv>=0 and iv==o.pk1+2:
            assert iv>o.utw+1
            g('s_mov_b64 exec, 1'); g.vmem(f'buffer_store_dword v32, v19, s[{rWS}:{rWS+3}], 0 offen sc1'); g('s_mov_b64 exec, -1')
    def post(iv):
        if iv==0: g.vmem(f'global_load_dword v32, v31, s[{pDBG}:{pDBG+1}] sc1','go')
        if iv==o.ufv-1:
            g(f's_lshr_b32 s10, s{sP}, 1\ns_mul_i32 s10, s10, 5\ns_and_b32 s9, s{sP}, 1\ns_mul_i32 s11, s9, 3\ns_add_u32 s10, s10, s11\ns_add_u32 s11, s10, 2\ns_sub_u32 s11, s11, s9')
            g(f's_mul_i32 s9, s9, 33\ns_sub_u32 s9, 34, s9\nv_min_u32 v39, s9, v0\ns_mul_i32 s9, s10, {ROWS}\ns_add_u32 s9, s9, {WS_UT}\nv_lshl_add_u32 v38, v0, 7, s9\nv_lshl_add_u32 v39, v39, 7, s9\nv_add_u32 v39, 8192, v39')
            g(f's_lshr_b32 s10, s10, 6\ns_lshr_b32 s11, s11, 6\ns_sub_u32 s11, s11, s10\ns_lshl_b32 s11, s11, 7\ns_lshl_b32 s10, s10, 7\ns_add_u32 s10, s10, {FL_UT}')
            g(f'v_bfe_u32 v33, v0, 4, 1\nv_mul_u32_u24 v33, s11, v33\nv_and_b32 v34, 15, v0\nv_lshl_add_u32 v33, v34, 2, v33\nv_add_u32 v33, s10, v33')
            if o.pkv<0: g(f's_lshl_b32 s9, s{sDJ}, 7\ns_add_u32 s9, s9, {FL_WP}\nv_and_b32 v34, 31, v0\ns_mov_b32 exec_lo, 0\nv_lshl_add_u32 v33, v34, 2, s9\ns_mov_b32 exec_lo, -1')
            g.vmem(f'buffer_load_dword v36, v33, s[{rWS}:{rWS+3}], 0 offen sc1','uf')
        if o.warm and 0<=iv-o.warm<8//o.wn: s.warm(iv-o.warm)
        if iv<100: dots()
        if iv==100+o.ufv:
            g.wait_vm('uf'); g('v_cmp_eq_u32 vcc, 1, v36\ns_nop 0\ns_cmp_eq_u64 vcc, -1\ns_cbranch_scc1 UFOK')
            s.spin(f'buffer_load_dword v36, v33, s[{rWS}:{rWS+3}], 0 offen sc1','v_cmp_eq_u32 vcc, 1, v36','-1'); g.lab('UFOK')
        if o.utch and iv==o.utch:
            for k in range(2): g.vmem(f'buffer_load_dword v{38+k}, v{38+k}, s[{rWS}:{rWS+3}], 0 offen sc1','ut')
    s.xloop('3',pre,post)
    s.stamp(2); gate(9); dots(); g('s_barrier')
    for c in['quad_perm:[1,0,3,2]','quad_perm:[2,3,0,1]','row_half_mirror']: g(f's_nop 2\nv_add_f32_dpp v30, v30, v30 {c} row_mask:0xf bank_mask:0xf')
    g(f'v_mul_f32 v30, {hex(fb(-1.4426950408889634))}, v30\nv_exp_f32 v30, v30\ns_lshl_b32 s9, s{sI}, 9\nv_add_f32 v30, 1.0, v30\nv_rcp_f32 v30, v30')
    g(f's_lshl_b32 s10, s{sJ}, 5\ns_add_u32 s9, s9, s10\ns_add_u32 s9, s9, {WS_G}\nv_lshlrev_b32 v18, 2, v18\ns_mov_b32 exec_lo, 0x01010101\ns_mov_b32 exec_hi, 0x01010101')
    g(f'buffer_store_dword v30, v18, s[{rWS}:{rWS+3}], s9 offen sc1')
    if o.pkv>=0:
        g(f's_lshl_b32 s9, s{sDJ}, 7\ns_add_u32 s9, s9, {FL_WP}')
        s.sspin(f's_buffer_load_dwordx16 s[16:31], s[{rWS}:{rWS+3}], s9 glc\ns_buffer_load_dwordx16 s[52:67], s[{rWS}:{rWS+3}], s9 offset:64 glc',list(range(16,32))+list(range(52,68)),1,'s_waitcnt vmcnt(0)')
        g(f'v_mov_b32 v20, {L_SY}\nv_mov_b32 v21, 1\nds_write_b32 v20, v21 offset:12')
    g('s_waitcnt vmcnt(0)'); s.arrive_h(20,21); s.stamp(3)
    if o.sp==2: s.lspin(34,35,L_SY+4,4); s.stamp(4)
    elif o.sp==3:
        g(f's_lshr_b32 s9, s{sTI}, 1\ns_lshl_b32 s9, s9, 7\ns_add_u32 s9, s9, {FL_H}'); s.lspin(34,35,L_SY+4,o.hn)
        t=f's_buffer_load_dwordx16 s[16:31], s[{rWS}:{rWS+3}], s9 glc\ns_waitcnt lgkmcnt(0)\n'
        for k in range(4): t+=f's_and_b64 s[{16+4*k}:{17+4*k}], s[{16+4*k}:{17+4*k}], s[{18+4*k}:{19+4*k}]\ns_and_b32 s{16+k}, s{16+4*k}, s{17+4*k}\nv_mov_b32 v{36+k}, s{16+k}\n'
        s.sspin(t+'ds_write_b128 v34, v[36:39] offset:12',range(16,20),1,'ds_read_b32 v35, v34\ns_waitcnt lgkmcnt(0)\n'*o.pace)
        g('v_mov_b32 v36, 1\nv_mov_b32 v37, 1\nds_write_b64 v34, v[36:37] offset:12\nds_write_b64 v34, v[36:37] offset:20'); s.stamp(4)
    elif o.sp:
        g(f's_lshr_b32 s9, s{sTI}, 1\ns_lshl_b32 s9, s9, 2\ns_and_b32 s10, s{sTI}, 1\ns_add_u32 s9, s9, s10\ns_lshl_b32 s9, s9, 5\ns_add_u32 s9, s9, {FL_H}')
        s.sspin(f's_buffer_load_dwordx8 s[16:23], s[{rWS}:{rWS+3}], s9 glc',range(16,24),1); s.stamp(4)
    else:
        g(f's_lshr_b32 s9, s{sTI}, 1\ns_lshl_b32 s9, s9, 7\ns_add_u32 s9, s9, {FL_H}\nv_lshrrev_b32 v20, 2, v0\nv_lshl_add_u32 v33, v20, 2, s9\nv_mov_b32 v34, {L_SY+8}\ns_mov_b64 {M}, 0')
        nq=3*o.ht
        g(f's_mul_i32 s9, s{sTI}, 196608\ns_and_b32 s10, s{sDJ}, {8//max(o.ht,1)-1}\ns_mul_i32 s10, s10, {512*nq}\ns_add_u32 s9, s9, s10\nv_mul_u32_u24 v20, 12288, v20\nv_and_b32 v21, 3, v0\nv_lshl_add_u32 v20, v21, 7, v20')
        g('s_mov_b32 s15, 0'); g.lab('HP'); g(f'buffer_load_dword v32, v33, s[{rWS}:{rWS+3}], 0 offen sc1\ns_waitcnt vmcnt(0)\nv_cmp_eq_u32 vcc, 1, v32\ns_add_u32 s15, s15, 1\ns_nop 0')
        g(f'v_mov_b32 v36, vcc_lo\nv_mov_b32 v37, vcc_hi\ns_andn2_b64 s[10:11], vcc, {M}\ns_cbranch_scc0 HN\nds_write_b64 v34, v[36:37]\ns_mov_b64 {M}, vcc')
        if nq:
            g('s_mov_b64 exec, s[10:11]')
            for q in range(nq): g(f'buffer_load_dword v{40+q}, v20, s[{rWS}:{rWS+3}], s9 offen offset:{512*q} sc1')
            g('s_mov_b64 exec, -1')
        g.lab('HN'); g(f's_cmp_gt_u32 s15, {SPIN}\ns_cbranch_scc1 HQ\ns_cmp_eq_u64 vcc, -1\ns_cbranch_scc0 HP'); g.lab('HQ')
        g(f'v_mov_b32 v36, -1\nv_mov_b32 v37, -1\nds_write_b64 v34, v[36:37]'); s.stamp(4)
    g(f's_lshl_b32 s9, s{sTI}, 8\ns_add_u32 s9, s9, {WS_G}\ns_mov_b32 m0, {L_G}\nv_lshlrev_b32 v20, 2, v0\nbuffer_load_dword v20, s[{rWS}:{rWS+3}], s9 offen sc1 lds')
    g(f's_mul_i32 s9, s{sDJ}, 640\ns_add_u32 s9, s9, {FL_Y}\nv_lshrrev_b32 v20, 3, v0\nv_and_b32 v21, 7, v0\nv_lshlrev_b32 v22, 3, v21\nv_lshl_add_u32 v22, v20, 7, v22\nv_add_u32 v33, s9, v22')
    g(f'v_mul_u32_u24 v20, {ROWS}, v20\nv_lshl_add_u32 v20, v21, 4, v20\ns_mul_i32 s9, s{sDJ}, {80*ROWS}\ns_lshl_b32 s10, s{sTI}, 7\ns_add_u32 s9, s9, s10')
    if o.sp:
        if o.sp>=2 and o.yn: s.lspin(34,35,L_SY+8,o.yn)
        g(f's_mul_i32 s10, s{sDJ}, 640\ns_add_u32 s10, s10, {FL_Y}')
        s.sspin('\n'.join(f's_buffer_load_dwordx4 s[{16+4*k}:{19+4*k}], s[{rWS}:{rWS+3}], s10 offset:{128*k} glc' for k in range(5)),range(16,36),0x01010101)
    else:
        g(f's_mov_b32 s{sKS}, -1\ns_mov_b32 s{sKS+1}, 0xff\ns_mov_b64 exec, {M}')
        s.spin(f'buffer_load_dwordx2 v[36:37], v33, s[{rWS}:{rWS+3}], 0 offen sc1','v_and_b32 v36, v36, v37\nv_cmp_eq_u32 vcc, 1, v36',M)
    g('s_mov_b64 exec, -1'); s.stamp(5)
    for q in range(10):
        g(f's_mov_b32 m0, {L_KS+4608+(q>>2)*8704+(q&3)*1024}\ns_add_u32 s10, s9, {WS_YT+8*q*ROWS}\nbuffer_load_dwordx4 v20, s[{rWS}:{rWS+3}], s10 offen sc1 lds')
    g('s_waitcnt vmcnt(0)'); s.stamp(6); g('s_barrier'); s.dump_stamps((7,[(k,8+k) for k in range(1,7)])); g('s_endpgm')
def warm(s,k):
    g=s.g
    if k==0: g(f's_lshl_b32 s9, s{sDJ}, 2\ns_and_b32 s10, s{sTI}, 3\ns_add_u32 s9, s9, s10\ns_mul_i32 s9, s9, 61440\ns_add_u32 s9, s9, {WS_WP}\nv_lshl_add_u32 v37, v0, 7, s9')
    for q in range(s.o.wn):
        if k*s.o.wn+q==7: g('v_subrev_u32 v37, 4096, v37')
        assert s.o.warm>s.o.ufv and s.o.pkv<0
        g.vmem(f'buffer_atomic_or v31, v37, s[{rWS}:{rWS+3}], 0 offen' if s.o.wat else f'buffer_load_dword v{40+q}, v37, s[{rWS}:{rWS+3}], 0 offen sc1','wm'); g('v_add_u32 v37, 8192, v37')
```

```python
import sys, os
sys.path.insert(0, os.path.dirname(os.path.abspath(__file__)))
from asmlib import G, v, s_, check
from consts import *
class Gen:
    def __init__(s,o):
        s.o=o; s.g=G(); s.nst=0; s.xw=True; s.uid=0
    def L(s,p): s.uid+=1; return f'{p}_{s.uid}'
    def dstamp(s,nm,iv):
        if s.o.diag==nm and 0<=iv-s.o.d0<7: s.stamp(1+iv-s.o.d0,True)
    def stamp(s,k,d=False):
        if s.o.diag and k and not d and not (s.o.diag==6 and s.xw): return
        if s.o.stamps: s.g(f's_memrealtime s[{84+2*k}:{85+2*k}]' if not s.o.clk else f's_memtime s[{84+2*k}:{85+2*k}] ; memrealtime')
    def dump_stamps(s,who=None):
        if not s.o.stamps: return
        g=s.g
        g('s_waitcnt lgkmcnt(0)\ns_mov_b64 exec, 1')
        if s.o.stamps==2:
            if who is None: return
            l=s.L('DS'); g(f's_cmp_eq_u32 s{sWAVE}, {who[0]}\ns_cbranch_scc0 {l}\ns_not_b32 s84, s84\nv_mov_b32 v1, 0')
            for k,slot in who[1]: g(f'v_mov_b32 v2, s{84+2*k}\nglobal_atomic_umax v1, v2, s[{pDBG}:{pDBG+1}] offset:{4*slot}')
            g.lab(l); return
        g(f's_lshl_b32 s9, s{sWG}, 3\ns_add_u32 s9, s9, s{sWAVE}\ns_lshl_b32 s9, s9, 5\ns_add_u32 s9, s9, {WS_ST}\nv_mov_b32 v1, s9')
        for k in range(8): g(f'v_mov_b32 v{4+k}, s{84+2*k}')
        g(f'buffer_store_dwordx4 v[4:7], v1, s[{rWS}:{rWS+3}], 0 offen\nbuffer_store_dwordx4 v[8:11], v1, s[{rWS}:{rWS+3}], 0 offen offset:16')
    def prologue(s):
        g=s.g; o=s.o
        g(f's_cmp_ge_u32 s{sWG}, 256\ns_cbranch_scc1 END')
        g('s_load_dwordx16 s[16:31], s[0:1], 0\ns_load_dwordx16 s[32:47], s[0:1], 64\ns_load_dwordx2 s[48:49], s[0:1], 128')
        if o.cwarm:
            g('s_getpc_b64 s[50:51]'); g.lab('PC0')
            g('v_lshlrev_b32 v1, 6, v0\nv_min_u32 v1, END-PC0, v1\nglobal_load_dword v255, v1, s[50:51]')
        if o.stamps:
            for k in range(1,8): g(f's_mov_b32 s{84+2*k}, 0')
        s.stamp(0)
        g('v_lshrrev_b32 v1, 6, v0\nv_and_b32 v0, 63, v0')
        g(f'v_readfirstlane_b32 s{sWAVE}, v1')
        g(f's_and_b32 s9, s{sWG}, 7\ns_lshr_b32 s10, s{sWG}, 3')
        g(f's_lshr_b32 s11, s9, 2\ns_lshl_b32 s11, s11, 3\ns_and_b32 s12, s10, 7\ns_add_u32 s{sI}, s11, s12')
        g(f's_and_b32 s11, s9, 3\ns_lshl_b32 s11, s11, 2\ns_lshr_b32 s12, s10, 3\ns_add_u32 s{sJ}, s11, s12')
        if o.jmap:
            jt=[0,7,3,4, 11,12,8,15, 6,2,9,5, 1,13,14,10]
            if o.jmap==2: jt=[jt[(k&12)+[0,3,2,1][k&3]] for k in range(16)]
            if o.jmap==3: jt=[3,7,4,0, 11,12,15,8, 6,2,5,9, 14,13,10,1]
            c=sum(x<<(4*k) for k,x in enumerate(jt))
            g(f's_mov_b32 s12, {hex(c&0xffffffff)}\ns_mov_b32 s13, {hex(c>>32)}\ns_lshl_b32 s11, s{sJ}, 2\ns_lshr_b64 s[12:13], s[12:13], s11\ns_and_b32 s{sJ}, s12, 15')
        if o.g2map==0:
            g(f's_lshl_b32 s11, s9, 2\ns_and_b32 s12, s10, 3\ns_add_u32 s{sTI}, s11, s12\ns_lshr_b32 s{sDJ}, s10, 2')
        else:
            g(f's_lshr_b32 s11, s9, 1\ns_lshl_b32 s11, s11, 3\ns_and_b32 s12, s10, 7\ns_add_u32 s{sTI}, s11, s12')
            g(f's_and_b32 s11, s9, 1\ns_lshl_b32 s11, s11, 2\ns_lshr_b32 s12, s10, 3\ns_add_u32 s{sDJ}, s11, s12')
        g(f's_cmp_lt_u32 s{sWAVE}, 4\ns_cbranch_scc1 CPATH')
    VX,VW=2,6
    def xoffs(s,VX,t=10):
        g=s.g
        g(f's_mul_i32 s9, s{sI}, {128*1280}')
        g(f'v_lshrrev_b32 v{t}, 3, v0\nv_mul_u32_u24 v{t}, 1280, v{t}\nv_add_u32 v{t}, s9, v{t}')
        g(f'v_and_b32 v{t+1}, 7, v0\nv_lshrrev_b32 v{t+2}, 4, v0\nv_xor_b32 v{t+1}, v{t+1}, v{t+2}')
        g(f'v_lshl_add_u32 v{VX}, v{t+1}, 4, v{t}')
        g(f'v_xor_b32 v{t+1}, 4, v{t+1}'); g(f'v_lshl_add_u32 v{VX+1}, v{t+1}, 4, v{t}\nv_add_u32 v{VX+1}, {8*1280-1024}, v{VX+1}')
        g(f'v_add_u32 v{VX+2}, {16*1280-2048}, v{VX}\nv_add_u32 v{VX+3}, {16*1280-2048}, v{VX+1}')
    def loader_setup(s,st0=None):
        g=s.g; VX,VW=s.VX,s.VW
        if st0 is None: st0=s.o.np
        g(f's_and_b32 s14, s{sWAVE}, 3')
        g(f's_lshl_b32 s12, s14, 12\ns_mul_i32 s13, s14, 3072\ns_mul_i32 s{sKB0}, s14, 40960'); g(f's_add_u32 s13, s13, {WOFF}')
        s.xoffs(VX)
        c=sum(x<<(4*k) for k,x in enumerate([0,1,2,3,4,5,6,7,8,9]+([2,1,4,5,8,7] if s.o.xm==1 else [0,1,4,4,7,7])))
        g(f's_mov_b32 s76, {hex(c&0xffffffff)}\ns_mov_b32 s77, {hex(c>>32)}\ns_lshl_b32 s9, s{sJ}, 2\ns_lshr_b64 s[76:77], s[76:77], s9\ns_and_b32 s76, s76, 15')
        if st0: g(f's_add_u32 s9, s76, {st0}\ns_cmp_ge_u32 s9, 10\ns_cselect_b32 s10, 10, 0\ns_sub_u32 s9, s9, s10')
        r='s9' if st0 else 's76'
        g(f's_mul_i32 s{sWO}, {r}, 196608\ns_lshl_b32 s9, {r}, 7\ns_add_u32 s{sXO}, s9, s{sKB0}')
        g(f's_mul_i32 s9, s14, {16*3072}\ns_mul_i32 s10, s{sJ}, 192\ns_add_u32 s9, s9, s10')
        for q in range(3):
            g(f'v_add_u32 v10, {64*q}, v0\nv_mul_u32_u24 v11, 171, v10\nv_lshrrev_b32 v11, 11, v11')
            if s.o.m16: g('v_bfe_u32 v12, v11, 3, 1\nv_mul_u32_u24 v13, 12, v11\nv_sub_u32 v13, v10, v13\nv_lshlrev_b32 v12, 1, v12\nv_xor_b32 v12, v12, v13\nv_sub_u32 v12, v12, v13\nv_add_u32 v12, v12, v0')
            g(f'v_mul_u32_u24 v11, {3072-192}, v11\nv_lshl_add_u32 v11, v{12 if s.o.m16 else 0}, 4, v11\nv_add_u32 v{VW+q}, s9, v11')
        if s.o.fakew:
            g(f's_mul_i32 s9, s14, 3072\ns_mul_i32 s10, s{sJ}, 12288\ns_add_u32 s9, s9, s10')
            for q in range(3): g(f'v_lshl_add_u32 v{VW+q}, v0, 4, s9')
        s.dstamp(4,0); g('s_waitcnt lgkmcnt(0)'); s.dstamp(4,1)
        srd(g,rX,pU,2621440); srd(g,rWG,pWG,1966080); srd(g,rWU,pWU,1966080); srd(g,rWS,pWS,WS_END)
    def stage(s,st,x3=False):
        VX,VW=s.VX,s.VW; b=SLOT(st); t=('st',st)
        G_=[]; ad='sub' if st&1 else 'add'
        if s.o.nodma and st>=3: return G_
        x=lambda q:('vm',f'buffer_load_dwordx4 v{VX+q}, s[{rX}:{rX+3}], s{sXO} offen offset:{1024*q} lds',t)
        w=lambda r,q:('vm',f'buffer_load_dwordx4 v{VW+q}, s[{r}:{r+3}], s{sWO} offen offset:{1024*q}{[""," nt"," sc1"," sc0"," sc0 sc1"][s.o.wfl]} lds',t)
        G_+=[[('i',f's_add_u32 m0, s12, {b}\ns_nop 0'),x(0)],[x(1)],[x(2)],[x(3)]]
        G_+=[[('i',f's_add_u32 m0, s13, {b}\ns_add_u32 s{sXO}, s{sXO}, 128'),w(rWG,0)],[w(rWG,1)],[w(rWG,2)]]
        G_+=[[('i',f's_add_u32 m0, s13, {b+UPOFF}\ns_nop 0'),w(rWU,0)],[w(rWU,1)],[w(rWU,2),('i',f's_add_u32 s{sWO}, s{sWO}, 196608\ns_cmp_eq_u32 s{sWO}, 1966080\ns_cselect_b32 s{sWO}, 0, s{sWO}\ns_cselect_b32 s{sXO}, s{sKB0}, s{sXO}')]]
        return G_
    def flat(s,G_): return [it for grp in G_ for it in grp]
    def spin(s,load,cmp_,mask):
        g=s.g; a=s.L('SP'); b=s.L('SX')
        g('s_mov_b32 s15, 0'); g.lab(a); g(load); g('s_waitcnt vmcnt(0)'); g(cmp_)
        g(f's_add_u32 s15, s15, 1\ns_cmp_gt_u32 s15, {SPIN}\ns_cbranch_scc1 {b}\ns_cmp_eq_u64 vcc, {mask}\ns_cbranch_scc0 {a}'); g.lab(b)
    def sspin(s,loads,regs,want,pace=''):
        g=s.g; a=s.L('SP'); b=s.L('SX')
        g('s_mov_b32 s15, 0'); g.lab(a); g(loads); g('s_waitcnt lgkmcnt(0)')
        r=list(regs)
        while len(r)>2: g(f's_and_b64 s[{r[0]}:{r[1]}], s[{r[0]}:{r[1]}], s[{r[-2]}:{r[-1]}]'); r=r[:-2]
        g(f's_and_b32 s{r[0]}, s{r[0]}, s{r[1]}\ns_add_u32 s15, s15, 1\ns_cmp_gt_u32 s15, {SPIN}\ns_cbranch_scc1 {b}\ns_cmp_eq_u32 s{r[0]}, {want}')
        if pace: g(f's_cbranch_scc1 {b}'); g(pace); g(f's_branch {a}')
        else: g(f's_cbranch_scc0 {a}')
        g.lab(b)
    def lspin(s,va,vb,addr,n):
        g=s.g; a=s.L('LP'); b=s.L('LX')
        g(f'v_mov_b32 v{va}, {addr}\ns_mov_b32 s15, 0'); g.lab(a); g(f'ds_read_b32 v{vb}, v{va}\ns_waitcnt lgkmcnt(0)\nv_readfirstlane_b32 s11, v{vb}')
        g(f's_add_u32 s15, s15, 1\ns_cmp_gt_u32 s15, {SPIN*8}\ns_cbranch_scc1 {b}\ns_cmp_ge_u32 s11, {n}\ns_cbranch_scc0 {a}'); g.lab(b)
    def arrive_h(s,va,vb):
        g=s.g; l=s.L('HA')
        g(f's_mov_b64 exec, 1\nv_mov_b32 v{va}, {L_SY}\nv_mov_b32 v{vb}, 1\nds_add_rtn_u32 v{va}, v{va}, v{vb}\ns_waitcnt lgkmcnt(0)')
        g(f'v_readfirstlane_b32 s9, v{va}\ns_lshl_b32 s10, s{sI}, 7\ns_lshl_b32 s11, s{sJ}, 2\ns_cmp_eq_u32 s9, 4\ns_cbranch_scc0 {l}')
        if s.o.hl: g('s_add_u32 s10, s10, s11\ns_and_b32 s11, s11, 32')
        g(f's_add_u32 s10, s10, s11\ns_add_u32 s10, s10, {FL_H}\nv_mov_b32 v{va}, s10')
        g(f'buffer_store_dword v{vb}, v{va}, s[{rWS}:{rWS+3}], 0 offen sc1'); g.lab(l); g('s_mov_b64 exec, -1')
    from gen_x import pack, xpose, xloop, xpaths, kgen_chunk, kgen_expand, conv, x3path, cmul, warm
    from gen_c import cpath, gemm1, gemm2, final, wtouch, g2setup, wd, wr, cpre
    def build(s):
        g=s.g
        s.prologue(); s.xpaths(); s.xw=False; s.cpath()
        g.lab('END'); g('s_endpgm')
        bad=check(g.L)
        for b in bad: print('HAZARD',b,file=sys.stderr)
        ref=open(os.path.join(os.path.dirname(os.path.abspath(__file__)),'..','cdna_kernels',NAME+'.s.ref')).read()
        hdr=ref[:ref.index('; Override launch')]
        hdr+='; generated by gen/gen.py: one persistent launch, 256 workgroups x 8 waves (4 GEMM waves + 4 loader/SSM waves)\n'
        hdr+='; @launch grid=(256,1,1) block=(512,1,1) lds=163840\n'
        hdr+=f'.amdgcn_target "amdgcn-amd-amdhsa--gfx950"\n.text\n.globl {NAME}_kernel\n.p2align 8\n.type {NAME}_kernel,@function\n{NAME}_kernel:\n'
        ftr=ref[ref.index('.section .rodata'):]
        return hdr+g.text()+ftr, len(bad)
def make(**kw):
    o=Opt(); o.stamps=False; o.rot=1; o.g2map=0; o.pk=0; o.prio=1; o.prio2=1; o.prio3=2; o.mgap=8; o.w0=12; o.w8=12; o.w9=8; o.dfrac=75; o.warm=0; o.heavy=10; o.n1=1; o.na=6; o.swp=1; o.kloop=0; o.ilv=1; o.ub=4; o.wn=2; o.kpre=100; o.kiv=2; o.utv=2; o.twd=0; o.m16=0; o.touch=1; o.pre=2; o.mprio=0; o.ual=0; o.prioc=0; o.priox=1; o.diag=0; o.d0=0; o.cwarm=1; o.nokgen=0; o.nodma=0; o.clk=0; o.bal=1; o.jmap=1; o.xt=0; o.fakew=0; o.wfl=0; o.r2=1; o.fake=0; o.utw=1; o.tord=9; o.ufv=6; o.usp=2; o.tw0=0; o.utch=106; o.hold=0; o.pkv=2; o.pk1=4; o.twn=4; o.prioe=3; o.priop=3; o.np=2; o.n8=3; o.n9=1; o.xiv=1; o.xn=2; o.sp=3; o.pace=6; o.hn=4; o.yst=6; o.yn=4; o.nsc=0; o.noconv=0; o.rt=0; o.ht=1; o.late=1; o.tlb=0; o.hl=0; o.yl=0; o.xm=1; o.alg=0; o.wpe=0; o.yp=0; o.al=1; o.alb=3; o.ft=1; o.ad=0; o.bi=0; o.hs=6; o.wat=0; o.cpre=0; o.cpo=0; o.xa=4; o.xb=5; o.xo=9; o.npre=0; o.lpre=0; o.p0=8; o.p1=40; o.l0=24; o.l1=44; o.sord=0; o.tb=0; o.tn=8; o.tx=-1; o.txb=3
    for k,x in kw.items(): setattr(o,k,x)
    return Gen(o).build()
if __name__=='__main__':
    kw={}
    out=sys.argv[1]
    for a in sys.argv[2:]:
        k,x=a.split('='); kw[k]=int(x)
    t,nb=make(**kw)
    open(out,'w').write(t)
    print('wrote',out,len(t.split('\n')),'lines, hazards:',nb)
```

```python
from consts import *
ACC=12; FR=[108,128]; VXA=2; VWA=6; VH=7
def cpath(s):
    g=s.g; o=s.o; g.reset(); g.lab('CPATH')
    if o.prioc: g(f's_setprio {o.prioc}')
    s.loader_setup(0)
    touch=lambda: s.wtouch(max(o.tb,o.np),min(o.tn,10-max(o.tb,o.np)))
    for st in range(o.np-o.sord):
        if o.tord==st: touch()
        emit(g,s.flat(s.stage(st))); s.dstamp(4,2+st)
    assert not(o.cpre and (o.npre or o.np>2))
    s.g2setup()
    def cp(k):
        if o.cpo==k:
            for b in range(min(o.cpre,2)): s.cpre(1,b)
    if o.cpre: s.cpre(0)
    cp(0)
    if o.tord==o.np: touch()
    s.xpose(0); g.wait_vm(('st',0)); s.dstamp(4,5); s.xpose(1)
    cp(1)
    if o.tord==8: touch()
    if o.sord: emit(g,s.flat(s.stage(o.np-1)))
    if o.tord==9: touch()
    cp(2)
    g(f's_lshr_b32 s12, s{sWAVE}, 1\ns_and_b32 s13, s{sWAVE}, 1')
    g('v_and_b32 v10, 31, v0\nv_lshlrev_b32 v10, 7, v10\ns_lshl_b32 s9, s12, 13\nv_add_u32 v10, s9, v10')
    g('v_bfe_u32 v11, v0, 1, 3\nv_lshrrev_b32 v12, 5, v0\nv_xor_b32 v11, v11, v12')
    g(f'v_lshl_add_u32 v{VXA}, v11, 4, v10')
    for ks in(1,2,3): g(f'v_xor_b32 v{VXA+ks}, {32*ks}, v{VXA}')
    for ks in range(4): g(f'v_add_u32 v{VXA+ks}, {SLOT(0)}, v{VXA+ks}')
    g(f'v_bfe_u32 v10, v0, 4, 1\nv_mul_u32_u24 v13, {UPOFF}, v10\nv_bfe_u32 v11, v0, 2, 2\nv_lshl_add_u32 v11, v12, 3, v11')
    g(f'v_mul_u32_u24 v11, 192, v11\nv_add_u32 v13, v13, v11\nv_and_b32 v11, 3, v0\nv_lshl_add_u32 v13, v11, 3, v13')
    g(f's_mul_i32 s9, s13, 96\ns_add_u32 s9, s9, {WOFF+SLOT(0)}\nv_add_u32 v{VWA}, s9, v13')
    g(f'v_and_b32 v11, 15, v0\nv_lshlrev_b32 v11, 4, v11\nv_lshl_add_u32 v11, v12, 8, v11\nv_lshl_add_u32 v{VH}, v10, 10, v11')
    srd(g,rOUT,pOUT,2621440)
    if o.npre or o.lpre: g(f'v_add_u32 v10, 4096, v{VL}')
    s.dstamp(4,6)
    for r in range(96): g(f'v_mov_b32 v{ACC+r}, 0')
    for b in range(o.cpre):
        s.cpre(2,b)
        if b==0 and o.cpre==3: g.wait_lg(); s.cpre(1,2)
    if o.tord==10: touch()
    g.wait_lg(); s.dstamp(4,4)
    s.gemm1(); s.gemm2(); s.final()
def touch(g): g(f'global_load_dword v252, v251, s[50:51]\nglobal_load_dword v253, v250, s[{pU}:{pU+1}]')
def wtouch(s,b0,nb):
    g=s.g
    g(f's_lshr_b32 s9, s{sWG}, 3\ns_and_b32 s9, s9, 7\ns_lshl_b32 s9, s9, 1\ns_bfe_u32 s10, s{sWAVE}, 0x10001\ns_add_u32 s9, s9, s10\ns_mul_i32 s9, s9, {4*nb}\ns_lshl_b32 s10, s76, 6\ns_add_u32 s9, s9, s10\ns_add_u32 s9, s9, {64*b0}\ns_mul_i32 s10, s{sJ}, 192')
    g(f'v_min_u32 v249, {8*nb-1}, v0\nv_lshrrev_b32 v253, 1, v249\nv_add_u32 v253, s9, v253\nv_subrev_u32 v250, 640, v253\nv_min_u32 v253, v253, v250\nv_mul_u32_u24 v253, 3072, v253')
    g(f'v_and_b32 v249, 1, v249\nv_lshl_add_u32 v253, v249, 7, v253\nv_add_u32 v251, s10, v253\ns_bitcmp0_b32 s{sWAVE}, 0\ns_cselect_b64 s[50:51], s[{pWG}:{pWG+1}], s[{pWU}:{pWU+1}]')
    g.vmem('global_load_dword v252, v251, s[50:51]')
def gemm1(s):
    g=s.g; o=s.o
    def reads(ks,F):
        x=lambda tj:(f'ds_read_b128 {v(F+12+4*tj,4)}, v{VXA+ks} offset:{4096*tj}',('x',F,tj))
        w=lambda fi,h:(f'ds_read_b64_tr_b16 {v(F+4*fi+2*h,2)}, v{VWA} offset:{ks*3072+h*768+fi*32}',('w',F,fi))
        return [x(0),w(0,0),w(0,1),x(1),w(1,0),w(1,1),w(2,0),w(2,1)]
    def mf(F,fi,tj):
        g.wait_lg(('w',F,fi)); g.wait_lg(('x',F,tj)); a=ACC+16*(3*tj+fi)
        g(f'v_mfma_f32_32x32x16_bf16 {v(a,16)}, {v(F+4*fi,4)}, {v(F+12+4*tj,4)}, {v(a,16)}')
    g(f's_mov_b32 s80, 0\ns_mov_b32 s81, 1\ns_mov_b32 s83, {-2*STAGE}')
    g('s_barrier'); s.stamp(1)
    for t,tag in reads(0,FR[0]): g.lds(t,tag)
    st0=list(g.lg)
    order=[(0,0),(0,1),(1,0),(1,1),(2,0),(2,1)]
    NL=8 if o.npre or o.lpre else 10-o.al; assert not(o.al and (NL==8 or o.cpre))
    def body(it,side):
        if it!=9: g(f's_cmp_eq_u32 s81, 2\ns_cselect_b32 s82, s83, {STAGE}\ns_cselect_b32 s81, -1, s81\ns_add_u32 s81, s81, 1')
        for ks in range(4):
            F=FR[ks&1]; R=reads((ks+1)&3,FR[(ks+1)&1])
            if ks==3 and it is not None:
                if it==9:
                    R=[]
                    if o.prioe: g(f's_setprio {o.prioe}')
                g.wait_lg()
            elif ks==3:
                g.wait_vm(('st',1)); g('s_cmp_eq_u32 s80, 0\ns_cbranch_scc1 G1W'); g.wait_vm(('st',2))
                if o.utw>1: g(f's_cmp_lt_u32 s80, {o.utw}\ns_cbranch_scc1 G1W')
                g.wait_vm('uts')
                if o.prioe and NL==10: g(f's_cmp_lg_u32 s80, 9\ns_cbranch_scc1 G1W\ns_setprio {o.prioe}')
                g.lab('G1W'); g.wait_lg()
                if o.diag and o.diag<4: g(f's_sub_u32 s9, s80, {o.d0}\ns_lshl_b32 s9, s9, 1\ns_sub_u32 s10, s9, 2\ns_cmp_lt_u32 s10, 14\ns_cselect_b32 m0, s9, 16\ns_nop 0\ns_movreld_b32 s84, s100\n'+('s_memtime' if o.clk else 's_memrealtime')+' s[100:101]')
            for k,(fi,tj) in enumerate(order):
                mf(F,fi,tj)
                if ks==3 and k==0: g('s_barrier')
                if k<4:
                    for t,tag in R[2*k:2*k+2]: g.lds(t,tag)
                emit(g,side.get(6*ks+k,[]))
                if k==4 and it!=9:
                    if ks==0: g(f'v_add_u32 v{VXA}, s82, v{VXA}\nv_add_u32 v{VXA+1}, s82, v{VXA+1}')
                    if ks==1: g(f'v_add_u32 v{VXA+2}, s82, v{VXA+2}')
                    if ks==2: g(f'v_add_u32 v{VXA+3}, s82, v{VXA+3}\nv_add_u32 v{VWA}, s82, v{VWA}')
                    if ks==3 and it is None: g(f's_add_u32 s80, s80, 1\ns_cmp_lt_u32 s80, {NL}')
    if o.alg: g(f'.p2align {o.alg}')
    g.lab('G1'); body(None,{})
    assert g.lg==st0
    g('s_cbranch_scc1 G1')
    if NL==8:
        E=[x for st in range(o.npre) for x in s.wr(st,10)]; P={}
        for k,x in enumerate(E): P.setdefault(o.p0+(o.p1-o.p0)*k//len(E),[]).extend(x)
        E=[x for st in range(o.lpre) for x in s.wd(o.na+st,10,79)]
        assert o.l0>=19
        for k,x in enumerate(E): P.setdefault(o.l0+(o.l1-o.l0)*k//len(E),[]).extend(x)
        body(8,P); body(9,{k-24:x for k,x in P.items()})
    if not o.al: s.stamp(2); s.dstamp(6,0)
    g(f's_lshl_b32 s9, s{sI}, 1\ns_add_u32 s9, s9, s12\ns_mul_i32 s9, s9, 196608')
    g(f's_mul_i32 s10, s{sJ}, 6\ns_mul_i32 s11, s13, 3\ns_add_u32 s10, s10, s11')
    for fi in range(3):
        g(f's_add_u32 s11, s10, {fi}\ns_lshr_b32 s15, s11, 1\ns_lshl_b32 s15, s15, 12\ns_and_b32 s11, s11, 1\ns_lshl_b32 s11, s11, 9\ns_add_u32 s11, s11, s15\ns_add_u32 s{80+fi}, s11, s9')
    def ep(fi,tj,part):
        a=ACC+16*(3*tj+fi)
        if part==0:
            for r in range(8): g(f'v_mul_f32 v{a+r}, v{a+r}, v{a+r+8}')
            return
        for r in range(4): g(f'v_cvt_pk_bf16_f32 v{a+r}, v{a+2*r}, v{a+2*r+1}')
        g.vmem(f'buffer_store_dwordx4 {v(a,4)}, v{VH}, s[{rWS}:{rWS+3}], s{80+fi} offen offset:{2048*tj} sc1','hst')
    if o.al:
        R3=reads(3,148)
        for ks in range(2):
            R=reads(ks+1,FR[1-ks])+R3[4*ks:4*ks+4]
            for k,(fi,tj) in enumerate(order):
                mf(FR[ks],fi,tj)
                for t,tag in R[2*k:2*k+2]: g.lds(t,tag)
        if o.prioe: g(f's_setprio {o.prioe}')
        for k in range(12):
            if k==o.alb: g.wait_lg()
            mf(148 if k&2 else FR[0],k>>2,k&1)
            if k==o.alb: g('s_barrier')
            if k>=4:
                if k&3==0: g('s_nop 7\ns_nop 0')
                ep((k>>2)-1,(k>>1)&1,k&1)
        s.stamp(2); s.dstamp(6,0); order=order[4:]; g('s_nop 4')
    for fi,tj in order: ep(fi,tj,0); ep(fi,tj,1)
    s.dstamp(6,1); g.wait_lg()
VL=1; VL2=2; VAR=3; VHA=4; A2=8; AF0=88
def AF(o,st): return AF0+20*((st+{6:3,5:1,4:3}[o.na])%o.na)
def g2setup(s):
    g=s.g; o=s.o
    g(f's_mul_i32 s67, s{sWAVE}, 10240\ns_lshl_b32 s64, s{sDJ}, 2\ns_add_u32 s64, s64, s{sWAVE}\ns_mul_i32 s64, s64, 61440\ns_add_u32 s65, s64, {WS_WP}')
    g(f'v_lshlrev_b32 v{VL}, 4, v0')
    if o.rt: g(f's_and_b32 s77, s{sTI}, 3\ns_mul_i32 s77, s77, 3')
    else: g(f's_mul_i32 s77, s{sDJ}, {o.r2}\ns_lshr_b32 s77, s77, 1\ns_cmp_ge_u32 s77, 12\ns_cselect_b32 s9, 12, 0\ns_sub_u32 s77, s77, s9')
    g(f's_add_u32 s66, s65, 61440\ns_mul_i32 s9, s77, 5120\ns_add_u32 s64, s65, s9')
    g(f's_add_u32 s79, s64, {5120*o.na}\ns_cmp_ge_u32 s79, s66\ns_cselect_b32 s9, 61440, 0\ns_sub_u32 s79, s79, s9')
    for k in range(o.cpre): emit(g,[nxt(64)])
def cpre(s,part,b=0):
    g=s.g; o=s.o; PD,PA=208,213; base=SLOT(2)+5120*(b&1)
    if part==0:
        for q in range(5): g(f'v_add_u32 v214, {64*q}, v0\nv_mul_u32_u24 v214, 6554, v214\nv_lshrrev_b32 v214, 16, v214\nv_mul_u32_u24 v214, 1120, v214\nv_add_u32 v{PD+q}, v214, v{VL}')
        g(f'v_add_u32 v{PD+4}, 4096, v{PD+4}'); srd(g,20,pWD,1966080)
        g('v_bfe_u32 v214, v0, 2, 2\nv_bfe_u32 v215, v0, 4, 1\nv_lshl_add_u32 v214, v215, 2, v214\nv_lshrrev_b32 v215, 5, v0\nv_lshl_add_u32 v214, v215, 4, v214')
        g(f'v_mul_u32_u24 v214, 160, v214\nv_and_b32 v215, 3, v0\nv_mul_u32_u24 v215, 40, v215\nv_add3_u32 v{PA}, v214, v215, s67')
        g(f's_mul_i32 s24, s{sWAVE}, {12*40960}\ns_mul_i32 s25, s{sDJ}, 160\ns_add_u32 s24, s24, s25')
    elif part==1:
        g(f's_add_u32 s25, s77, {b}\ns_cmp_ge_u32 s25, 12\ns_cselect_b32 s26, 12, 0\ns_sub_u32 s25, s25, s26\ns_add_u32 m0, s67, {base}\ns_mul_i32 s25, s25, 40960\ns_add_u32 s25, s25, s24')
        for q in range(5):
            if q==4: g(f's_add_u32 m0, s67, {base+4096}\ns_nop 0')
            g.vmem(f'buffer_load_dwordx4 v{PD+q}, s[20:23], s25 offen offset:{1024*(q&3)} lds',('cb',b))
    else:
        g.wait_vm(('cb',b))
        for n in range(5):
            for h in range(2): g.lds(f'ds_read_b64_tr_b16 {v(AF(o,b)+4*n+2*h,2)}, v{PA} offset:{base+8*n+1280*h}')
def nxt(p): return ('i',f's_add_u32 s{p}, s{p}, 5120\ns_cmp_eq_u32 s{p}, s66\ns_cselect_b32 s{p}, s65, s{p}')
def wd(s,st,V2=VL2,p=64):
    W1='' if s.o.nsc&1 else ' sc1'
    b=RS((st-s.o.na)&3); t=('wd',st); d=lambda q:('vm',f'buffer_load_dwordx4 v{V2 if q==4 else VL}, s[{rWS}:{rWS+3}], s{p} offen offset:{1024*(q&3)}{W1} lds',t)
    return [[('i',f's_add_u32 m0, s67, {b}\ns_nop 0'),d(0)],[d(1)],[d(2)],[d(3),('i',f's_add_u32 m0, s67, {b+4096}')],[('i','s_nop 0'),d(4),nxt(p)]]
def wr(s,st,V2=VL2,p=64):
    W1='' if s.o.nsc&1 else ' sc1'
    d=lambda q:('vm',f'buffer_load_dwordx4 {v(AF(s.o,st)+4*q,4)}, v{V2 if q==4 else VL}, s[{rWS}:{rWS+3}], s{p} offen offset:{1024*(q&3)}{W1}',('wr',st))
    return [[d(0)],[d(1)],[d(2)],[d(3)],[d(4),nxt(p)]]
def gemm2(s):
    g=s.g; o=s.o; NA=o.na; HB=AF0+20*NA; NH=(256-HB)//16; af=globals()['AF']; AF=lambda st:af(o,st); HF=lambda st,tau:HB+16*(st%NH)+4*tau
    assert (NA==6 or not(o.npre or o.cpre)) and o.late and (o.pkv<0 or not(o.npre or o.lpre) or (o.wpe and o.p0>=19))
    g(f'v_add_u32 v{VL2}, 4096, v{VL}\nv_add_u32 v{VAR}, s67, v{VL}')
    H1='' if o.nsc&2 else ' sc1'
    wd=lambda st:s.wd(st,VL2,79); wr=lambda st:s.wr(st,VL2,64 if st<NA else 79)
    PF=[st for st in range(NA+4) if not(st<max(o.npre,o.cpre) or NA<=st<NA+o.lpre)]
    def rd(st):
        return [[('lds',f'ds_read_b128 {v(AF(st)+4*n,4)}, v{VAR} offset:{RS((st-NA)&3)+1024*n}',('a',st))] for n in range(5)]
    pf=lambda st:wr(st) if st<NA else wd(st)
    if o.pkv>=0 and not o.wpe and o.n1: s.lspin(8,9,L_SY+12,1)
    for st in PF[:o.n1]: emit(g,s.flat(pf(st)))
    g(f's_mul_i32 s14, s{sTI}, 196608\ns_mul_i32 s9, s{sWAVE}, 49152\ns_add_u32 s14, s14, s9')
    g(f's_add_u32 s81, s14, 49152\ns_lshl_b32 s9, s77, 12\ns_add_u32 s80, s14, s9')
    for tau in range(4): g(f's_add_u32 s9, s{sWAVE}, {tau}\ns_and_b32 s9, s9, 3\ns_lshl_b32 s9, s9, 10\nv_add_u32 v{VHA+tau}, s9, v{VL}')
    g.wait_vm('hst'); s.arrive_h(8,9); s.stamp(3); s.dstamp(6,2)
    if o.prioe: g(f's_setprio {o.priop}')
    if o.pkv>=0 and not o.wpe and not o.n1: s.lspin(8,9,L_SY+12,1)
    if o.hold:
        g(f'v_mov_b32 v8, {L_SY}\ns_mov_b32 s15, 0'); g.lab('AW'); g('ds_read_b32 v9, v8\ns_waitcnt lgkmcnt(0)\nv_readfirstlane_b32 s9, v9')
        g(f's_add_u32 s15, s15, 1\ns_cmp_gt_u32 s15, {SPIN*8}\ns_cbranch_scc1 AX\ns_cmp_ge_u32 s9, 5\ns_cbranch_scc0 AW'); g.lab('AX')
    sig=f'v_mov_b32 v0, {L_SY+4}\ns_mov_b64 exec, 1\nds_inc_u32 v0, v0\ns_mov_b64 exec, -1'
    for st in PF[o.n1:]:
        if o.hs and st==PF[-o.hs]: g(sig+'\ns_nop 2')
        if o.ad and st==PF[-o.ad]:
            assert o.hs>=o.ad and o.ad<=4
            g(f's_lshl_b32 s9, s{sWAVE}, 2\ns_add_u32 s9, s9, {L_SY+16}\nv_mov_b32 v8, s9\nds_read_b32 v9, v8\ns_waitcnt lgkmcnt(0)\nv_readfirstlane_b32 s9, v9\ns_nop 0\ns_cmp_eq_u32 s9, 1\ns_cbranch_scc1 G2B')
            sv=(list(g.vm),list(g.lg))
        emit(g,s.flat(pf(st)))
        if st==NA-1: s.dstamp(6,3)
    s.dstamp(5,0); s.dstamp(6,4)
    if o.sp==3:
        if not o.hs: g(sig)
        g(f's_lshl_b32 s9, s{sWAVE}, 2\ns_add_u32 s9, s9, {L_SY+16}'); s.lspin(8,9,'s9',1)
    elif o.sp:
        g(f's_lshr_b32 s9, s{sTI}, 1\ns_lshl_b32 s9, s9, 3\ns_add_u32 s9, s9, s{sWAVE}\ns_lshl_b32 s9, s9, 4\ns_add_u32 s9, s9, {FL_H}')
        s.sspin(f's_buffer_load_dwordx4 s[16:19], s[{rWS}:{rWS+3}], s9 glc',range(16,20),1,'s_waitcnt vmcnt(0)\n'*(o.pace>0)+f'ds_read_b32 v9, v{VAR}\ns_waitcnt lgkmcnt(0)\n'*max(o.pace-1,0))
        if o.sp==2: g(f'v_mov_b32 v0, {L_SY+4}\nv_mov_b32 v9, 1\ns_mov_b64 exec, 1\nds_add_u32 v0, v9\ns_mov_b64 exec, -1')
    else:
        g(f's_lshl_b32 s10, s{sWAVE}, 1\ns_add_u32 s10, s10, {L_SY+8}\nv_mov_b32 v8, s10\ns_mov_b32 s15, 0')
        g.lab('HW'); g('ds_read_u16 v9, v8\ns_waitcnt lgkmcnt(0)\nv_readfirstlane_b32 s9, v9')
        g(f's_add_u32 s15, s15, 1\ns_cmp_gt_u32 s15, {SPIN*8}\ns_cbranch_scc1 HX\ns_cmp_eq_u32 s9, 0xffff\ns_cbranch_scc0 HW'); g.lab('HX')
    def tail(D):
        if o.prio: g(f's_setprio {o.prio2}')
        s.stamp(4); s.dstamp(5,1); s.dstamp(6,5)
        TO=[1,2,3,0] if o.ft else [0,1,2,3]
        def hl(st,tau):
            return [('vm',f'buffer_load_dwordx4 {v(HF(st,tau),4)}, v{VHA+tau}, s[{rWS}:{rWS+3}], s80 offen{H1}',('h',st,tau))]+([('i','s_add_u32 s80, s80, 4096\ns_cmp_eq_u32 s80, s81\ns_cselect_b32 s80, s14, s80')] if tau==TO[3] else [])
        for st in range(NH):
            for tau in TO: emit(g,hl(st,tau))
        s.dstamp(5,2)
        if not o.bi:
            for st in D: emit(g,s.flat(pf(st)))
            D=[]
        for st in range(12):
            main=[]
            for tau in TO:
                for n in range(5):
                    a=A2+20*tau+4*n; c=v(a,4) if st else '0'
                    it=[]
                    if n==0: it.append(('wvm',('h',st,tau)))
                    it.append(('i',f'v_mfma_f32_16x16x32_bf16 {v(a,4)}, {v(AF(st)+4*n,4)}, {v(HF(st,tau),4)}, {c}'))
                    if n==4 and st+NH<12: it+=hl(st+NH,tau)
                    main.append(it)
            side=[]; k=st-1+NA
            if o.late:
                if st>=1 and k<12:
                    if k<NA+4: R=rd(k); R[0]=[('wvm',('wd',k))]+R[0]; side+=R
                    else: side+=wr(k)
            else:
                if st>=2 and k+3<12:
                    W=wd(k+3); W[0]=[('wlg',('a',k-1))]+W[0]; side+=W
                if st>=1 and k<12:
                    R=rd(k); R[0]=[('wvm',('wd',k))]+R[0]; side+=R
            if st<len(D): side=pf(D[st])+side
            side=[x for grp in side for x in(grp,[])]
            if o.ft and st==10: side=[[('i',x)] for x in fadr(1)]
            if o.ft and st==11:
                side=[[('i',x)] for x in fadr(2)]+[[('lds',pw(t_,n))] for t_ in(1,2,3) for n in range(5)]; assert len(side)==20
            g.wait_lg(('a',st)); g.wait_vm(('wr',st))
            for k,it in enumerate(main):
                emit(g,it)
                if k<len(side): emit(g,side[k])
            if o.sp>=2 and st==o.yst: g('s_mov_b64 exec, 1'); g.lds('ds_inc_u32 v0, v0 offset:4'); g('s_mov_b64 exec, -1')
            if st in(0,3,7): s.dstamp(5,3+(st+1)//4)
    tail([])
    if o.ad:
        g('s_branch G2E'); e=(list(g.vm),list(g.lg)); g.vm,g.lg=sv; g.lab('G2B'); tail(PF[-o.ad:]); assert e==(g.vm,g.lg),(e,g.vm,g.lg); g.lab('G2E')
    if o.sp>=2 and not o.ft: g(f'v_lshrrev_b32 v0, 4, v{VL}')
    s.stamp(5); s.dstamp(5,6); s.dstamp(6,6)
Y=AF0; GG=AF0+10; T_=AF0+12; O_=AF0+20; YA=AF0+32; P_=192
def pw(tau,n): return f'ds_write_b128 v148, {v(A2+20*tau+4*n,4)} offset:{RS(tau-1)+n*1024}'
def fadr(part):
    if part==2: return [f'v_add_u32 v5, {4*n}, v150\nv_lshrrev_b32 v5, 5, v5\nv_mad_u32_u24 v{YA+n}, v5, s10, v152' for n in range(5)]
    L=[f'v_lshrrev_b32 v0, 4, v{VL}\nv_add_u32 v148, s67, v{VL}']
    for tau in range(1,4): L.append(f's_sub_u32 s9, s{sWAVE}, {tau}\ns_and_b32 s9, s9, 3\ns_mul_i32 s10, s9, 10240\nv_add_u32 v{1+tau}, s10, v{VL}')
    L+=['v_lshrrev_b32 v149, 4, v0\nv_mul_u32_u24 v149, 20, v149','v_bfe_u32 v150, v0, 2, 2\nv_add_u32 v150, v149, v150','v_and_b32 v152, 3, v0',
        f's_lshl_b32 s9, s{sWAVE}, 5\ns_add_u32 s10, s9, {L_KS+4608}\nv_lshl_add_u32 v152, v152, 3, s10\nv_lshl_add_u32 v152, v150, 7, v152',
        f'v_and_b32 v151, 15, v0\ns_lshl_b32 s9, s9, 1\ns_add_u32 s10, s9, {L_G}\nv_lshl_add_u32 v6, v151, 2, s10','v_mul_u32_u24 v151, 1280, v151\nv_lshl_add_u32 v7, v149, 1, v151',
        f's_lshl_b32 s9, s{sTI}, 2\ns_add_u32 s9, s9, s{sWAVE}\ns_mul_i32 s9, s9, 20480\ns_mul_i32 s10, s{sDJ}, 160\ns_add_u32 s11, s9, s10\ns_movk_i32 s10, 4608']
    return L
def final(s):
    g=s.g; o=s.o
    if not o.ft:
        for x in fadr(1): g(x)
        for tau in range(1,4):
            for n in range(5): g.lds(pw(tau,n))
        for x in fadr(2): g(x)
    g.wait_lg(); g('s_barrier'); s.stamp(6)
    g.lds(f'ds_read_b32 v{GG}, v6','g')
    for n in range(5):
        g.lds(f'ds_read_b64_tr_b16 {v(Y+2*n,2)}, v{YA+n} offset:{512*n}',('y',n))
        for tau in range(1,4): g.lds(f'ds_read_b128 {v(P_+12*n+4*(tau-1),4)}, v{1+tau} offset:{RS(tau-1)+n*1024}',('p',n))
        if n>=2: fin(g,n-2)
    fin(g,3); fin(g,4)
    s.stamp(7); s.dump_stamps((0,[(k,1+k) for k in range(8)])); g('s_endpgm')
def fin(g,n):
    g.wait_lg(('p',n)); a=A2+4*n; O=O_; T=T_; p=P_+12*n
    for e in range(4): g(f'v_add_f32 v{a+e}, v{a+e}, v{p+e}\nv_add_f32 v{p+4+e}, v{p+4+e}, v{p+8+e}')
    for e in range(4):
        g(f'v_lshlrev_b32 v{T+e}, 16, v{Y+2*n+e//2}' if e%2==0 else f'v_and_b32 v{T+e}, 0xffff0000, v{Y+2*n+e//2}')
        g(f'v_add_f32 v{a+e}, v{a+e}, v{p+4+e}')
    for e in range(4): g(f'v_sub_f32 v{T+e}, v{T+e}, v{a+e}')
    for e in range(4): g(f'v_fmac_f32 v{a+e}, v{GG}, v{T+e}')
    g(f'v_cvt_pk_bf16_f32 v{O+2*n}, v{a}, v{a+1}\nv_cvt_pk_bf16_f32 v{O+2*n+1}, v{a+2}, v{a+3}')
    if n in(1,3): g.vmem(f'buffer_store_dwordx4 {v(O+2*n-2,4)}, v7, s[{rOUT}:{rOUT+3}], s11 offen offset:{8*(n-1)}')
    if n==4: g.vmem(f'buffer_store_dwordx2 {v(O+8,2)}, v7, s[{rOUT}:{rOUT+3}], s11 offen offset:32')
```

```python
from consts import *
I=lambda t:('i',t)
SA=10; FA=18; RAW=20; LDT,DSK=32,33; DT,DTL,DTP=34,35,36
B_,C_,ZR,ZI,CC=38,40,42,43,44; E1,E8,E256,E512,E1024=46,50,54,58,62; TM=66; CVT=70; P0=80
BF,AFR,KA=128,160,192
sKS,sUB,sT0,sT1=34,35,50,51
def cmul(s,d,a,b):
    if s.o.pk:
        return [I(f'v_pk_mul_f32 {v(d,2)}, {v(a,2)}, {v(b,2)} op_sel:[0,0] op_sel_hi:[0,1]'),
                I(f'v_pk_fma_f32 {v(d,2)}, {v(a,2)}, {v(b,2)}, {v(d,2)} op_sel:[1,1,0] op_sel_hi:[1,0,1] neg_lo:[0,1,0]')]
    return [I(f'v_mul_f32 v{d}, v{a}, v{b}'),I(f'v_mul_f32 v{d+1}, v{a}, v{b+1}'),
            I(f'v_fma_f32 v{d}, -v{a+1}, v{b+1}, v{d}'),I(f'v_fmac_f32 v{d+1}, v{a+1}, v{b}')]
def Ex(dst,x,TM,ZR):
    L=[]
    if x!=1:
        L+=[I(f'v_mul_f32 v{TM}, {hex(fb(x))}, v{ZR}'),I(f'v_mul_f32 v{TM+1}, {hex(fb(x))}, v{ZR+1}'),I(f'v_fract_f32 v{TM+1}, v{TM+1}')]; m=TM
    else: L+=[I(f'v_fract_f32 v{TM+1}, v{ZR+1}')]; m=ZR
    L+=[I(f'v_exp_f32 v{TM}, v{m}'),I(f'v_cos_f32 v{dst}, v{TM+1}'),I(f'v_sin_f32 v{dst+1}, v{TM+1}'),
        I(f'v_mul_f32 v{dst}, v{dst}, v{TM}'),I(f'v_mul_f32 v{dst+1}, v{dst+1}, v{TM}')]
    return L
def fb(x):
    import struct; return struct.unpack('<I',struct.pack('<f',x))[0]
class Rows:
    def __init__(s,L): s.L=L; s.pend={}
    def put(s,row,r):
        k=row>>2
        if k in s.pend:
            r0,row0=s.pend.pop(k)
            s.L.append(('lds',f'ds_write2_b32 v{SA+k}, v{r0}, v{r} offset0:{68*(row0&3)} offset1:{68*(row&3)}'))
        else: s.pend[k]=(r,row)
    def flush(s):
        for k,(r,row) in s.pend.items(): s.L.append(('lds',f'ds_write_b32 v{SA+k}, v{r} offset:{272*(row&3)}'))
        s.pend={}
CH=50; HH=54; ONE=65; KSC=37; EA,EB=68,70; RW=80
def unp(dst,a,ch): return I([f'v_lshlrev_b32 v{dst}, 16, v{RAW+a}',f'v_and_b32 v{dst}, 0xffff0000, v{RAW+a}',f'v_lshlrev_b32 v{dst}, 16, v{RAW+6+a}'][ch])
def hmul(d,a,b,conj):
    n1,n2=(' neg_hi:[0,1]','') if conj else ('',' neg_lo:[0,1,0]')
    return [I(f'v_pk_mul_f16 v{d}, v{a}, v{b} op_sel:[0,0] op_sel_hi:[0,1]{n1}'),I(f'v_pk_fma_f16 v{d}, v{a}, v{b}, v{d} op_sel:[1,1,0] op_sel_hi:[1,0,1]{n2}')]
def kgen_pre(s):
    L=[('wvm','par'),I(f'v_lshlrev_b32 v{LDT}, 16, v{LDT}'),I(f'v_mul_f32 v{LDT}, {hex(fb(1.4426950408889634))}, v{LDT}'),I(f'v_exp_f32 v{LDT}, v{LDT}'),I(f'v_mov_b32 v{ONE}, 0x3c00'),
       I(f'v_cvt_pk_bf16_f32 v{DT}, v{LDT}, v{LDT}'),I(f'v_lshlrev_b32 v{DT}, 16, v{DT}'),
       I(f'v_mul_f32 v{DTL}, {hex(fb(1.4426950408889634))}, v{DT}'),I(f'v_mul_f32 v{DTP}, {hex(fb(0.15915494309189535))}, v{DT}')]
    for ch in range(3):
        L+=[unp(d,2+a,ch) for a,d in enumerate([B_,B_+1,C_,C_+1])]+s.cmul(CC+2*ch,C_,B_)
        L.append(I(f'v_max3_f32 v{TM}, |v{CC+2*ch}|, |v{CC+2*ch+1}|, '+(f'v{TM}' if ch else '0')))
    t=''
    for c in['quad_perm:[1,0,3,2]','quad_perm:[2,3,0,1]','row_half_mirror','row_mirror']: t+=f's_nop 1\nv_max_f32_dpp v{TM}, v{TM}, v{TM} {c} row_mask:0xf bank_mask:0xf\n'
    t+=f's_nop 0\nv_readlane_b32 s9, v{TM}, 0\nv_readlane_b32 s10, v{TM}, 16\nv_readlane_b32 s11, v{TM}, 32\nv_readlane_b32 s15, v{TM}, 48\n'
    t+='s_max_u32 s9, s9, s10\ns_max_u32 s11, s11, s15\ns_max_u32 s9, s9, s11\ns_lshr_b32 s9, s9, 23\ns_max_u32 s9, s9, 11\ns_min_u32 s9, s9, 253\n'
    t+=f's_sub_u32 s10, 264, s9\ns_lshl_b32 s10, s10, 23\ns_sub_u32 s9, s9, 10\ns_lshl_b32 s9, s9, 23\nv_mul_f32 v{KSC}, s9, v{DT}\n'
    for k in range(6): t+=f'v_mul_f32 v{CC+k}, s10, v{CC+k}\n'
    L.append(I(t))
    for ch in range(3): L+=[unp(ZS[ch],0,ch),unp(ZS[ch]+1,1,ch),I(f'v_mul_f32 v{ZS[ch]}, v{ZS[ch]}, v{DTL}'),I(f'v_mul_f32 v{ZS[ch]+1}, v{ZS[ch]+1}, v{DTP}')]
    for ch in range(3): L.append(I(f'v_cvt_pk_f16_f32 v{CH+ch}, v{CC+2*ch}, -v{CC+2*ch+1}'))
    return L
ZS=[42,112,114]
def units(L,R,U,ilv):
    i=0
    while i<len(U):
        u=U[i]
        if u[0] is None: R.put(u[4],u[1]); i+=1; continue
        grp=[u]
        while ilv and len(grp)<=ilv and i+len(grp)<len(U):
            n=U[i+len(grp)]
            if n[0] is None or n[1] in [x[0] for x in grp]: break
            grp.append(n)
        ms=[hmul(*x[:4]) for x in grp]
        L+=[m[0] for m in ms]+[m[1] for m in ms]
        for x in grp:
            if x[4] is not None: R.put(x[4],x[0])
        i+=len(grp)
def kgen_chunk(s,ch):
    h=lambda x:HH+x.bit_length()-1; C2=[]
    for x0,n,a,b,t in[(1,4,68,70,66),(32,5,74,76,72)]:
        c=Ex(a,x0,t,ZS[ch]); c.append(I(f'v_cvt_pk_f16_f32 v{h(x0)}, v{a}, v{a+1}'))
        for k in range(1,n+1):
            c+=[I(f'v_mul_f32 v{t}, v{a+1}, v{a+1}'),I(f'v_add_f32 v{t+1}, v{a}, v{a}'),I(f'v_fma_f32 v{b}, v{a}, v{a}, -v{t}'),I(f'v_mul_f32 v{b+1}, v{t+1}, v{a+1}'),
                I(f'v_cvt_pk_f16_f32 v{h(x0<<k)}, v{b}, v{b+1}')]; a,b=b,a
        C2.append(c)
    H=merge(C2[1],[[x] for x in C2[0]]) if s.o.ilv else C2[0]+C2[1]
    R=Rows(H); rb={0:ONE}; U=[(None,ONE,0,0,0)]
    for j in range(1,32):
        hb=1<<(j.bit_length()-1)
        if j==hb: rb[j]=h(8*j); U.append((None,rb[j],0,0,j))
        else: rb[j]=RW+j; U.append((RW+j,rb[j-hb],h(8*hb),0,j))
    units(H,R,U,s.o.ilv)
    T=[]
    for k in range(8): T.append(('lds',f'ds_read_b128 {v(BF+4*k,4)}, v{FA} offset:{32*k}',('b',k)))
    R=Rows(T); row=lambda half,r:8*(r//4)+4*half+r%4
    P={0:CH+ch}; nx=[RW]; U=[(None,P[0],0,0,row(0,0))]
    def mk(x,y,r):
        d=nx[0]; nx[0]+=1; U.append((d,P[x-y],h(y),1,r)); P[x]=d
    for hi in range(1,8): mk(hi,1<<(hi.bit_length()-1),row(0,hi))
    mk(8,8,None)
    for n,k in enumerate([0,2,4,6,8]): mk(256+k,256,row(0,8+n))
    for n,k in enumerate([0,4,8]): mk(512+k,512,row(0,13+n))
    for n,k in enumerate([0,4,8]): mk(768+k,512,row(1,n))
    for m in range(4):
        for n,k in enumerate([0,8]): mk(1024+256*m+k,1024,row(1,3+2*m+n))
    units(T,R,U,s.o.ilv); R.flush()
    for k in range(8): T.append(('lds',f'ds_read_b128 {v(AFR+4*k,4)}, v{FA} offset:{32*k}',('a',k)))
    M=[]
    for k in range(8):
        c=v(KA,16) if (ch or k or s.o.kloop) else '0'
        t=f'v_mfma_f32_32x32x16_f16 {v(KA,16)}, {v(AFR+4*k,4)}, {v(BF+4*k,4)}, {c}'
        if s.o.mprio: t=f's_setprio 3\n{t}\ns_setprio {s.o.priox}'
        M.append([('wlg',('a',k)),I(t)])
    return H,T,M
def kgen_expand(s):
    L=[]; VE,VZ,t=10,11,12; X=BF; cv=lambda d,a,b:L.append(I(f'v_cvt_pk_bf16_f32 v{d}, v{a}, v{b}'))
    L+=[I(f'v_and_b32 v{t}, 31, v0'),I(f'v_lshlrev_b32 v{t}, 4, v{t}'),I(f's_add_u32 s9, s{sKS}, 496'),I(f'v_sub_u32 v{VE}, s9, v{t}'),
        I(f'v_add_u32 v{VZ}, s{sKS}, v{t}'),I(f'v_and_b32 v{t}, 1, v0'),I(f'v_cmp_eq_u32 vcc, 1, v{t}'),I(f'v_lshlrev_b32 v{DSK}, 16, v{DSK}')]
    for k in range(4): L.append(I(f'v_mov_b32 v{X+k}, 0'))
    L.append(I('s_nop 0'))
    for k in range(16): L.append(I(f'v_mul_f32 v{KA+k}, v{KA+k}, v{KSC}'))
    L.append(I(f's_mov_b64 exec, 1\nv_add_f32 v{KA}, v{KA}, v{DSK}\ns_mov_b32 exec_lo, -1'))
    L+=[('lds',f'ds_write_b128 v{VZ}, {v(X,4)} offset:4096'),I('s_mov_b32 exec_hi, -1')]
    n=[1]
    def chunk(e,base,pre=None):
        x=X+4*n[0]; n[0]+=1; h='hi' if base<768 else 'lo'; L.append(('cut',))
        if pre: L.append(I(pre))
        for k in range(4): cv(x+k,e[7-2*k],e[6-2*k])
        L.extend([I(f's_mov_b32 exec_{h}, 0'),('lds',f'ds_write_b128 v{VE}, {v(x,4)} offset:{2*(1792-base)}'),I(f's_mov_b32 exec_{h}, -1')])
    a=lambda r:KA+r
    chunk([a(r) for r in range(8)],0)
    chunk([a(8+k) for k in[0,0,1,2,2,2,3,4]],256)
    chunk([a(13+k) for k in[0,0,0,1,1,1,2,2]],512)
    chunk([a(k) for k in[0,0,0,1,1,1,2,2]],768)
    for m in range(4):
        z0,z8=a(3+2*m),a(4+2*m)
        chunk([z0,z0,z0,z0,t,z8,z8,z8],1024+256*m,f'v_cndmask_b32 v{t}, v{z0}, v{z8}, vcc')
    return L
UA,UO,UD=244,248,224
def xpose(s,part):
    g=s.g
    if part==0:
        g(f's_lshl_b32 s10, s14, 12\ns_add_u32 s10, s10, {SLOT(0)}')
        g('v_lshrrev_b32 v240, 4, v0\nv_bfe_u32 v241, v0, 2, 2\nv_lshl_add_u32 v241, v240, 3, v241\nv_lshlrev_b32 v241, 7, v241\nv_bfe_u32 v242, v0, 1, 1\nv_bfe_u32 v243, v0, 3, 1\nv_xor_b32 v242, v242, v243')
        g('v_bfe_u32 v243, v0, 4, 1\nv_lshl_add_u32 v242, v243, 2, v242\nv_lshl_add_u32 v241, v242, 4, v241\nv_and_b32 v242, 1, v0\nv_lshl_add_u32 v241, v242, 3, v241')
        for m in range(4): g(f'v_xor_b32 v242, {32*m}, v241\nv_add_u32 v{UA+m}, s10, v242')
        g(f'v_and_b32 v242, 15, v0\nv_mul_u32_u24 v242, {ROWS}, v242\nv_lshl_add_u32 v242, v240, 4, v242\ns_bitcmp1_b32 {hex([0x3ff,0x877b,0x837f][s.o.xm])}, s{sJ}\ns_cselect_b32 s9, 0, 0x40000000\nv_add_u32 v{UO}, s9, v242')
        g(f's_mul_i32 s9, s76, {64*ROWS}\ns_lshl_b32 s10, s{sI}, 8\ns_add_u32 s9, s9, s10\ns_lshl_b32 s10, s14, 6\ns_add_u32 s9, s9, s10')
        return
    for db in range(4):
        for h in range(2): g.lds(f'ds_read_b64_tr_b16 {v(UD+4*db+2*h,2)}, v{UA+(db^h)} offset:{512*h}',('ut',db))
    for db in range(4):
        g(f's_add_u32 s10, s9, {WS_UT+16*db*ROWS}'); g.wait_lg(('ut',db))
        g.vmem(f'buffer_store_dwordx4 {v(UD+4*db,4)}, v{UO}, s[{rWS}:{rWS+3}], s10 offen sc1','uts')
def pack(s,part,x3):
    g=s.g; PD,PA,PF=200,206,224; base=L_TMP if x3 else L_KS+2*8704
    if part==0:
        g(f's_lshr_b32 s9, s{sP}, 1\ns_mul_i32 s77, s9, 3\n'+(f's_and_b32 s9, s{sP}, 1\ns_add_u32 s77, s77, s9' if x3 else 's_add_u32 s77, s77, 2'))
        g(f's_lshr_b32 s10, s{sP}, 5\ns_mul_i32 s9, s10, 48\ns_sub_u32 s9, s77, s9\ns_mul_i32 s9, s9, 40960\ns_mul_i32 s10, s10, 160\ns_add_u32 s78, s9, s10\nv_lshlrev_b32 v1, 4, v0')
        for q in range(5):
            g(f'v_add_u32 v9, {64*q}, v0\nv_mul_u32_u24 v9, 6554, v9\nv_lshrrev_b32 v9, 16, v9\nv_mul_u32_u24 v9, 1120, v9\nv_add_u32 v{PD+q}, v9, v1')
        g(f's_mov_b32 m0, {base}\nv_add_u32 v{PD+4}, 4096, v{PD+4}\ns_waitcnt lgkmcnt(0)'); srd(g,rWD,pWD,1966080)
        for q in range(5):
            if q==4: g(f's_mov_b32 m0, {base+4096}\ns_nop 0')
            g.vmem(f'buffer_load_dwordx4 v{PD+q}, s[{rWD}:{rWD+3}], s78 offen offset:{1024*(q&3)} lds','blk')
        g(f's_mul_i32 s78, s77, 5120\ns_add_u32 s78, s78, {WS_WP}')
        return
    g('v_bfe_u32 v200, v0, 2, 2\nv_bfe_u32 v201, v0, 4, 1\nv_lshl_add_u32 v200, v201, 2, v200\nv_lshrrev_b32 v201, 5, v0\nv_lshl_add_u32 v200, v201, 4, v200')
    g(f'v_mul_u32_u24 v200, 160, v200\nv_and_b32 v201, 3, v0\nv_mul_u32_u24 v201, 40, v201\ns_mov_b32 s9, {base}\nv_add3_u32 v{PA}, v200, v201, s9\nv_add_u32 v201, 4096, v1')
    g.wait_vm('blk')
    for n in range(5):
        for h in range(2): g.lds(f'ds_read_b64_tr_b16 {v(PF+4*n+2*h,2)}, v{PA} offset:{8*n+1280*h}',('pf',n))
    for n in range(5):
        g.wait_lg(('pf',n)); g.vmem(f'buffer_store_dwordx4 {v(PF+4*n,4)}, v{201 if n==4 else 1}, s[{rWS}:{rWS+3}], s78 offen offset:{1024*(n&3)} sc1','pk')
def xloop(s,role,pre=None,post=None,extra={}):
    g=s.g; o=s.o
    if role!='3' and o.twd==2:
        g(f's_mul_i32 s9, s{sWG}, 3\ns_add_u32 s9, s9, s14\ns_mul_i32 s9, s9, 2560\ns_add_u32 s72, s{pWD}, s9\ns_addc_u32 s73, s{pWD+1}, 0')
    if role!='3' and o.twd==3:
        g(f's_lshr_b32 s9, s{sWG}, 3\ns_mul_i32 s9, s9, 3\ns_add_u32 s9, s9, s14\ns_mul_i32 s9, s9, 20480\ns_lshr_b32 s10, s{sDJ}, 2\ns_mul_i32 s10, s10, 640\ns_add_u32 s9, s9, s10')
        g(f's_add_u32 s64, s{pWD}, s9\ns_addc_u32 s65, s{pWD+1}, 0\ns_and_b32 s66, s{sWG}, 6\ns_mul_i32 s66, s66, 2560')
    for iv in range(9):
        if pre: pre(iv)
        st=s.stage(iv+2,role=='3') if o.np-2<=iv<=7 else []
        ex=extra.get(iv,[])
        if ex and ex[0]=='pc':
            st=st+[[]]*20; st=[grp+ex[1][k-o.xo:k-o.xo+1]*(k>=o.xo) for k,grp in enumerate(st)]; ex=[]
        emit(g,merge(ex,st,0,len(ex)*o.dfrac//100) if ex else s.flat(st))
        if iv==o.tx: s.wtouch(o.txb,10-o.txb)
        if role!='3' and o.twd==2 and 0<=iv-o.tw0<o.twn:
            for k in range(40*(iv-o.tw0)//o.twn,40*(iv+1-o.tw0)//o.twn): g(f's_load_dword s74, s[72:73], {64*k}')
        if role!='K' and iv==o.pkv: s.pack(0,role=='3')
        if role!='K' and iv==o.pk1 and o.pkv>=0: s.pack(1,role=='3')
        if role!='3' and o.twd==3 and iv>=1:
            for k in range(10): g(f's_load_dword s67, s[64:65], s66 offset:{1280*(k//5)+128*(k%5)}')
            g('s_add_u32 s66, s66, 2560\ns_cmp_eq_u32 s66, 20480\ns_cselect_b32 s66, 0, s66')
        if post: post(iv)
        s.dstamp(1,iv); g.wait_vm(('st',iv+1))
        if iv==(o.utw if o.pkv<0 else o.pk1+1): g.wait_vm('pk')
        if post: post(100+iv)
        s.dstamp(2,iv); g('s_barrier'); s.dstamp(3,iv)
    if pre: pre(9)
    emit(g,extra.get(9,[0,[]])[1])
def xpaths(s):
    g=s.g; o=s.o; g.reset()
    if o.priox: g(f's_setprio {o.priox}')
    g(f's_and_b32 s14, s{sWAVE}, 3\ns_mul_i32 s80, s14, 8704\ns_add_u32 s80, s80, {L_KS+4608}')
    if o.bal: g(f's_lshr_b32 s9, s{sWG}, {3*o.bal}\ns_xor_b32 s9, s9, s{sWG}\ns_and_b32 s9, s9, 1\ns_mul_i32 s9, s9, {1+8**o.bal}\ns_xor_b32 s{sP}, s9, s{sWG}')
    else: g(f's_mov_b32 s{sP}, s{sWG}')
    g(f's_cmp_eq_u32 s14, 3\ns_cbranch_scc1 X3PATH\ns_and_b32 s9, s{sP}, 1\ns_add_u32 s10, s9, s14\ns_cmp_eq_u32 s10, 3\ns_cbranch_scc1 LOADONLY')
    g(f's_lshr_b32 s10, s{sP}, 1\ns_mul_i32 s10, s10, 5\ns_mul_i32 s9, s9, 3\ns_add_u32 s10, s10, s9\ns_add_u32 s{sD}, s10, s14')
    g(f's_mul_i32 s9, s{sD}, 384\nv_lshl_add_u32 v14, v0, 2, s9\nv_lshl_add_u32 v15, v0, 1, s9\ns_lshl_b32 s9, s{sD}, 1\nv_mov_b32 v16, s9')
    g('s_waitcnt lgkmcnt(0)')
    g.vmem(f'global_load_ushort v{LDT}, v16, s[{pLDT}:{pLDT+1}]','par')
    for a,p in enumerate([pAR,pAI,pBR,pBI,pCR,pCI]):
        g.vmem(f'global_load_dword v{RAW+a}, v14, s[{p}:{p+1}]','par'); g.vmem(f'global_load_ushort v{RAW+6+a}, v15, s[{p}:{p+1}] offset:256','par')
    g.vmem(f'global_load_ushort v{DSK}, v16, s[{pDS}:{pDS+1}]','par')
    s.loader_setup()
    g(f's_sub_u32 s{sKS}, s80, 4608\ns_mul_i32 s{sUB}, s14, 16640\ns_add_u32 s{sUB}, s{sUB}, {L_U}')
    g(f'v_lshl_add_u32 v{SA}, v0, 2, s{sKS}')
    for k in range(1,8): g(f'v_add_u32 v{SA+k}, {1088*k}, v{SA}')
    g(f'v_and_b32 v{FA}, 31, v0\nv_mul_u32_u24 v{FA}, 272, v{FA}\nv_lshrrev_b32 v19, 5, v0\nv_lshlrev_b32 v19, 4, v19\nv_add3_u32 v{FA}, v{FA}, v19, s{sKS}')
    if o.diag==4: s.dstamp(4,2); g.wait_vm('par'); s.dstamp(4,3)
    main=kgen_pre(s); M=None
    if o.kloop:
        H,T,M=s.kgen_chunk(0)
        for k in range(16): g(f'v_mov_b32 v{KA+k}, 0')
        emit(g,main); g('s_mov_b32 s15, 0\ns_cmp_lg_u32 s15, 0'); g.lab('KL')
        Mb=[[m[0],I(f's_cbranch_scc0 KM{k}'),m[1],I(f'KM{k}:')] for k,m in enumerate(M)]
        body=merge(H,Mb,4,4+8*o.mgap)+T
        t=G(); emit(t,body); g.lg=list(t.lg); emit(g,body); assert g.lg==t.lg
        g(f'v_mov_b32 v42, v112\nv_mov_b32 v43, v113\nv_mov_b32 v112, v114\nv_mov_b32 v113, v115\nv_mov_b32 v{CH}, v{CH+1}\nv_mov_b32 v{CH+1}, v{CH+2}')
        g('s_add_u32 s15, s15, 1\ns_cmp_lt_u32 s15, 3\ns_cbranch_scc1 KL'); main=[]
    else:
      for ch in range(3):
        H,T,M2=s.kgen_chunk(ch)
        if M: H=merge(H,M,4,4+8*o.mgap)
        main+=H+T; M=M2
    main+=[it for m in M for it in m]
    if o.nokgen: main=[I('s_nop 0')]*20
    n0=len(main)*o.kpre//100; rest=main[n0:]; extra={}
    for k in range(o.kiv): extra[k]=rest[len(rest)*k//o.kiv:len(rest)*(k+1)//o.kiv]
    emit(g,main[:n0]); s.dstamp(4,4); g('s_barrier'); s.stamp(1); s.dstamp(4,5)
    post=None; E=s.kgen_expand(); x0=max(o.kiv,o.xiv) if rest else o.xiv
    cut=[0]+[k for k,it in enumerate(E) if it[0]=='cut']+[len(E)]
    Pc=[('blk',[it for it in E[cut[k]:cut[k+1]] if it[0]!='cut']) for k in range(len(cut)-1)]
    extra[x0]=('pc',Pc[:o.xa]); Pc=Pc[o.xa:]
    while Pc: x0+=1; extra[x0]=('pc',Pc[:o.xb]); Pc=Pc[o.xb:]
    assert x0<=9
    def pre(iv):
        if iv<8: return
        if iv==8: g(f's_mul_i32 s{sT0}, s{sD}, {ROWS}\nv_lshlrev_b32 v9, 4, v0')
        if iv==9: s.stamp(2)
        n=[0,o.n8,o.n8+o.n9,4]
        for c in range(n[iv-8],n[iv-7]):
            g(f's_add_u32 m0, s{sUB}, {32+4160*c}\ns_add_u32 s{sT1}, s{sT0}, {WS_UT-6+2*c}')
            for q in range(4): g.vmem(f'buffer_load_dwordx4 v9, s[{rWS}:{rWS+3}], s{sT1} offen offset:{1024*q} sc1 lds','u')
    s.upre=pre
    s.xloop('K',pre,post,extra)
    s.conv()
    g.lab('LOADONLY'); g.reset()
    if o.pkv<0: s.pack(0,0)
    s.loader_setup()
    if o.pkv<0: s.pack(1,0)
    g('s_barrier'); s.xloop('L'); g('s_endpgm')
    g.lab('X3PATH'); g.reset(); s.x3path()
def conv(s):
    g=s.g; o=s.o; VU,VK,VS=2,3,4; CA=32; UF=[64,128]; KF=[96,160]
    g(f'v_and_b32 v5, 3, v0\nv_mul_u32_u24 v5, 4160, v5\nv_bfe_u32 v6, v0, 2, 2\nv_lshl_add_u32 v5, v6, 3, v5\nv_lshrrev_b32 v7, 4, v0\nv_lshl_add_u32 v5, v7, 4, v5')
    g(f's_add_u32 s9, s{sUB}, 8\nv_add_u32 v{VU}, s9, v5\nv_and_b32 v8, 15, v0\nv_lshlrev_b32 v5, 5, v8\nv_lshlrev_b32 v6, 4, v7\nv_sub_u32 v6, v6, v5')
    g(f's_add_u32 s10, s{sKS}, 480\nv_add_u32 v{VK}, s10, v6')
    g(f'v_bfe_u32 v6, v0, 4, 1\nv_lshl_add_u32 v5, v6, 9, v5\nv_lshrrev_b32 v6, 5, v0\nv_lshl_add_u32 v{VS}, v6, 4, v5')
    g(f'v_mul_u32_u24 v5, 4160, v7\nv_lshl_add_u32 v5, v8, 1, v5\nv_add_u32 v5, s9, v5\nv_add_u32 v6, v7, v8\nv_cmp_gt_u32 vcc, 15, v6')
    for r in range(32): g(f'v_mov_b32 v{CA+r}, 0')
    g('s_barrier'); s.stamp(3); s.upre(10)
    g(f's_add_u32 s{sT0}, s{sT0}, {WS_YT}\ns_mov_b32 s15, 0')
    if o.prio: g(f's_setprio {o.prio3}')
    g.wait_vm('u'); s.stamp(4)
    g(f's_mov_b64 exec, vcc\nds_write_b16 v5, v{CA}\ns_mov_b64 exec, -1')
    def reads(b,off):
        R=[]
        for p in range(8):
            R.append(f'ds_read_b128 {v(KF[b]+4*p,4)}, v{VK} offset:{3584-512*p+off}')
            R+=[f'ds_read_b64 {v(UF[b]+4*p+2*h,2)}, v{VU} offset:{512*p+8*h+off}' for h in range(2)]
        return R
    rem={q:[(p,q-p) for p in range(q+1)] for q in range(8)}; order=[]; last=[]
    while any(rem.values()):
        c=[q for q in rem if rem[q] and q not in last[-3:]] or [q for q in rem if rem[q] and q not in last[-2:]] or [q for q in rem if rem[q]]
        q=max(c,key=lambda q:len(rem[q])); order.append((q,)+rem[q].pop(0)); last.append(q)
    for t in reads(0,0): g(t)
    if o.alg: g(f'.p2align {o.alg}')
    g.lab('CV')
    for b in range(2):
        R=reads(1-b,64 if b==0 else 0); g('s_waitcnt lgkmcnt(0)')
        for k,(q,p,m) in enumerate(order):
            g(f'v_mfma_f32_16x16x32_bf16 {v(CA+4*q,4)}, {v(UF[b]+4*p,4)}, {v(KF[b]+4*m,4)}, {v(CA+4*q,4)}')
            if k<24: g(R[k])
            if k==26 and b==0: g(f'v_add_u32 v{VU}, 128, v{VU}\nv_add_u32 v{VK}, 128, v{VK}')
            if k==34 and b==1: g(f's_add_u32 s15, s15, 1\ns_cmp_lt_u32 s15, {1 if o.noconv else 4}')
    g('s_cbranch_scc1 CV'); s.stamp(5)
    if o.yl==2: g(f's_lshr_b32 s9, s{sD}, 3\ns_lshl_b32 s9, s9, 6\ns_and_b32 s10, s{sD}, 7\ns_add_u32 s9, s9, s10\ns_add_u32 s9, s9, {FL_Y}\nv_mov_b32 v5, s9\nv_mov_b32 v6, 1')
    elif o.yl: g(f's_mul_i32 s9, s{sD}, 205\ns_lshr_b32 s9, s9, 14\ns_mul_i32 s9, s9, 560\ns_add_u32 s9, s9, s{sD}\ns_add_u32 s9, s9, {FL_Y}\nv_mov_b32 v5, s9\nv_mov_b32 v6, 1')
    else: g(f's_lshr_b32 s9, s{sD}, 4\ns_lshl_b32 s9, s9, 7\ns_and_b32 s10, s{sD}, 15\ns_lshl_b32 s10, s10, {0 if o.sp else 2}\ns_add_u32 s9, s9, s10\ns_add_u32 s9, s9, {FL_Y}\nv_mov_b32 v5, s9\nv_mov_b32 v6, 1')
    for q in range(8):
        for h in range(2): g(f'v_cvt_pk_bf16_f32 v{10+2*q+h}, v{CA+4*q+2*h}, v{CA+4*q+2*h+1}')
    for q in range(0,8,2):
        x=10+2*q; g(f'v_permlane16_swap_b32 v{x}, v{x+2}\nv_permlane16_swap_b32 v{x+1}, v{x+3}')
        g(f'buffer_store_dwordx4 {v(x,4)}, v{VS}, s[{rWS}:{rWS+3}], s{sT0} offen offset:{512*q} sc1')
    g(f's_waitcnt vmcnt(0)\ns_mov_b64 exec, 1\nbuffer_store_{"byte" if o.sp else "dword"} v6, v5, s[{rWS}:{rWS+3}], 0 offen sc1')
    s.stamp(6); s.dump_stamps(); g('s_endpgm')
def x3path(s):
    g=s.g; o=s.o; M=f's[{sKS}:{sKS+1}]'
    if o.pkv<0: s.pack(0,1)
    s.loader_setup()
    srd(g,rGW,pGW,1280); g(f'v_lshlrev_b32 v9, 4, v0\ns_mov_b32 m0, {L_GW}')
    for k in range(4): g(f'v_mov_b32 v{28+k}, 0')
    for q in range(2): g.vmem(f'buffer_load_dwordx4 v9, s[{rGW}:{rGW+3}], 0 offen offset:{1024*q} lds','gw')
    if o.tlb:
        srd(g,rWD,pOUT,2621440); g(f'v_min_u32 v40, {(WS_END>>o.tlb)-1}, v0\nv_lshlrev_b32 v40, {o.tlb}, v40\nv_lshlrev_b32 v41, {o.tlb}, v0')
        g.vmem(f'buffer_load_dword v40, v40, s[{rWS}:{rWS+3}], 0 offen','tl'); g.vmem(f'buffer_load_dword v41, v41, s[{rWD}:{rWD+3}], 0 offen','tl')
    g(f's_cmp_eq_u32 s{sWG}, 0\ns_cbranch_scc0 NOINIT')
    for k in range(10):
        if k%4==0: g(f's_mov_b32 s9, {WS_FL+1024*k}')
        g(f'buffer_store_dwordx4 v[28:31], v9, s[{rWS}:{rWS+3}], s9 offen offset:{1024*(k%4)} sc1')
    g(f's_waitcnt vmcnt(0)\nv_mov_b32 v11, 1\ns_mov_b64 exec, 1\nglobal_store_dword v31, v11, s[{pDBG}:{pDBG+1}] sc1\ns_mov_b64 exec, -1')
    g.lab('NOINIT')
    g(f'v_mov_b32 v10, {L_SY}\nds_write_b128 v10, v[28:31]\nds_write_b128 v10, v[28:31] offset:16')
    g(f's_and_b32 s9, s{sJ}, 1\ns_lshl_b32 s9, s9, 2\nv_lshrrev_b32 v20, 4, v0\nv_add_u32 v21, s9, v20\nv_and_b32 v22, 7, v0\nv_xor_b32 v21, v21, v22')
    g(f'v_lshrrev_b32 v18, 3, v0\ns_lshl_b32 s9, s{sJ}, 10\nv_lshlrev_b32 v23, 7, v18\nv_lshl_add_u32 v23, v21, 4, v23\nv_add_u32 v10, s9, v23\nv_add_u32 v11, {2*STAGE}, v10')
    g(f'v_lshlrev_b32 v12, 4, v22\nv_add_u32 v12, {L_GW}, v12\ns_lshl_b32 s79, s76, 7')
    s.dstamp(4,3)
    if o.pkv<0: s.pack(1,1)
    g.wait_lg(); g.wait_vm('gw'); s.dstamp(4,4); g('s_barrier'); s.stamp(1); s.dstamp(4,5)
    def gate(st): g(f'v_add_u32 v13, s79, v12\nds_read_b128 v[20:23], v{11 if SLOT(st)==2*STAGE else 10} offset:{SLOT(st)%(2*STAGE)}\nds_read_b128 v[24:27], v13\ns_add_u32 s79, s79, 128\ns_cmp_eq_u32 s79, 1280\ns_cselect_b32 s79, 0, s79')
    def dots():
        g.wait_lg()
        for k in range(4):
            g(f'v_lshlrev_b32 v28, 16, v{20+k}\nv_lshlrev_b32 v29, 16, v{24+k}\nv_and_b32 v{20+k}, 0xffff0000, v{20+k}\nv_and_b32 v{24+k}, 0xffff0000, v{24+k}')
            g(f'v_fmac_f32 v30, v28, v29\nv_fmac_f32 v30, v{20+k}, v{24+k}')
    def wpoll():
        g(f's_lshl_b32 s9, s{sDJ}, 7\ns_add_u32 s9, s9, {FL_WP}')
        s.sspin(f's_buffer_load_dwordx16 s[16:31], s[{rWS}:{rWS+3}], s9 glc\ns_buffer_load_dwordx16 s[52:67], s[{rWS}:{rWS+3}], s9 offset:64 glc',list(range(16,32))+list(range(52,68)),1,'s_waitcnt vmcnt(0)')
    def pre(iv):
        if iv==9: return
        gate(iv)
        if iv==o.utw+1:
            g.wait_vm('go'); g('v_readfirstlane_b32 s9, v32\ns_nop 0\ns_cmp_eq_u32 s9, 1\ns_cbranch_scc1 GOOK')
            s.spin(f'global_load_dword v32, v31, s[{pDBG}:{pDBG+1}] sc1','v_cmp_eq_u32 vcc, 1, v32','-1'); g.lab('GOOK')
            g(f's_lshl_b32 s9, s76, 7\ns_lshl_b32 s10, s{sI}, 2\ns_add_u32 s9, s9, s10\ns_add_u32 s9, s9, {FL_UT}\ns_bitcmp1_b32 {hex([0x3ff,0x877b,0x837f][s.o.xm])}, s{sJ}\ns_cselect_b32 s9, s9, 0x40000000')
            g(f's_lshl_b32 s10, s{sP}, 2\ns_add_u32 s10, s10, {FL_WP}\nv_mov_b32 v19, s9\ns_mov_b64 exec, 1\nv_mov_b32 v19, s10\ns_mov_b64 exec, {3 if o.pkv<0 else 2}')
            g.vmem(f'buffer_store_dword v32, v19, s[{rWS}:{rWS+3}], 0 offen sc1'); g('s_mov_b64 exec, -1')
        if o.pkv>=0 and iv==o.pk1+2:
            assert iv>o.utw+1
            g('s_mov_b64 exec, 1'); g.vmem(f'buffer_store_dword v32, v19, s[{rWS}:{rWS+3}], 0 offen sc1'); g('s_mov_b64 exec, -1')
    def post(iv):
        if iv==0: g.vmem(f'global_load_dword v32, v31, s[{pDBG}:{pDBG+1}] sc1','go')
        if iv==o.ufv-1:
            g(f's_lshr_b32 s10, s{sP}, 1\ns_mul_i32 s10, s10, 5\ns_and_b32 s9, s{sP}, 1\ns_mul_i32 s11, s9, 3\ns_add_u32 s10, s10, s11\ns_add_u32 s11, s10, 2\ns_sub_u32 s11, s11, s9')
            g(f's_mul_i32 s9, s9, 33\ns_sub_u32 s9, 34, s9\nv_min_u32 v39, s9, v0\ns_mul_i32 s9, s10, {ROWS}\ns_add_u32 s9, s9, {WS_UT}\nv_lshl_add_u32 v38, v0, 7, s9\nv_lshl_add_u32 v39, v39, 7, s9\nv_add_u32 v39, 8192, v39')
            g(f's_lshr_b32 s10, s10, 6\ns_lshr_b32 s11, s11, 6\ns_sub_u32 s11, s11, s10\ns_lshl_b32 s11, s11, 7\ns_lshl_b32 s10, s10, 7\ns_add_u32 s10, s10, {FL_UT}')
            g(f'v_bfe_u32 v33, v0, 4, 1\nv_mul_u32_u24 v33, s11, v33\nv_and_b32 v34, 15, v0\nv_lshl_add_u32 v33, v34, 2, v33\nv_add_u32 v33, s10, v33')
            if o.pkv<0: g(f's_lshl_b32 s9, s{sDJ}, 7\ns_add_u32 s9, s9, {FL_WP}\nv_and_b32 v34, 31, v0\ns_mov_b32 exec_lo, 0\nv_lshl_add_u32 v33, v34, 2, s9\ns_mov_b32 exec_lo, -1')
            g.vmem(f'buffer_load_dword v36, v33, s[{rWS}:{rWS+3}], 0 offen sc1','uf')
        if o.warm and 0<=iv-o.warm<8//o.wn: s.warm(iv-o.warm)
        if iv<100: dots()
        if iv==8 and o.pkv>=0 and o.wpe: wpoll()
        if iv==100+o.ufv:
            g.wait_vm('uf'); g('v_cmp_eq_u32 vcc, 1, v36\ns_nop 0\ns_cmp_eq_u64 vcc, -1\ns_cbranch_scc1 UFOK')
            s.spin(f'buffer_load_dword v36, v33, s[{rWS}:{rWS+3}], 0 offen sc1','v_cmp_eq_u32 vcc, 1, v36','-1'); g.lab('UFOK')
        if o.utch and iv==o.utch:
            for k in range(2): g.vmem(f'buffer_load_dword v{38+k}, v{38+k}, s[{rWS}:{rWS+3}], 0 offen sc1','ut')
    s.xloop('3',pre,post)
    s.stamp(2); gate(9); dots(); g('s_barrier')
    for c in['quad_perm:[1,0,3,2]','quad_perm:[2,3,0,1]','row_half_mirror']: g(f's_nop 2\nv_add_f32_dpp v30, v30, v30 {c} row_mask:0xf bank_mask:0xf')
    g(f'v_mul_f32 v30, {hex(fb(-1.4426950408889634))}, v30\nv_exp_f32 v30, v30\ns_lshl_b32 s9, s{sI}, 9\nv_add_f32 v30, 1.0, v30\nv_rcp_f32 v30, v30')
    g(f's_lshl_b32 s10, s{sJ}, 5\ns_add_u32 s9, s9, s10\ns_add_u32 s9, s9, {WS_G}\nv_lshlrev_b32 v18, 2, v18\ns_mov_b32 exec_lo, 0x01010101\ns_mov_b32 exec_hi, 0x01010101')
    g(f'buffer_store_dword v30, v18, s[{rWS}:{rWS+3}], s9 offen sc1')
    if o.pkv>=0 and not o.wpe:
        wpoll()
        g(f'v_mov_b32 v20, {L_SY}\nv_mov_b32 v21, 1\nds_write_b32 v20, v21 offset:12')
    g('s_waitcnt vmcnt(0)'); s.arrive_h(20,21); s.stamp(3)
    if o.sp==2: s.lspin(34,35,L_SY+4,4); s.stamp(4)
    elif o.sp==3:
        g(f's_lshr_b32 s9, s{sTI}, 1\ns_lshl_b32 s9, s9, 7\ns_add_u32 s9, s9, {FL_H}'); s.lspin(34,35,L_SY+4,o.hn)
        t=f's_buffer_load_dwordx16 s[16:31], s[{rWS}:{rWS+3}], s9 glc\ns_waitcnt lgkmcnt(0)\n'
        if o.hl: t=f's_buffer_load_dwordx8 s[16:23], s[{rWS}:{rWS+3}], s9 glc\ns_buffer_load_dwordx8 s[24:31], s[{rWS}:{rWS+3}], s9 offset:64 glc\ns_waitcnt lgkmcnt(0)\n'
        for k in range(4): t+=f's_and_b64 s[{16+4*k}:{17+4*k}], s[{16+4*k}:{17+4*k}], s[{18+4*k}:{19+4*k}]\ns_and_b32 s{16+k}, s{16+4*k}, s{17+4*k}\nv_mov_b32 v{36+k}, s{16+k}\n'
        s.sspin(t+'ds_write_b128 v34, v[36:39] offset:12',range(16,20),1,'ds_read_b32 v35, v34\ns_waitcnt lgkmcnt(0)\n'*o.pace)
        g('v_mov_b32 v36, 1\nv_mov_b32 v37, 1\nds_write_b64 v34, v[36:37] offset:12\nds_write_b64 v34, v[36:37] offset:20'); s.stamp(4)
    elif o.sp:
        g(f's_lshr_b32 s9, s{sTI}, 1\ns_lshl_b32 s9, s9, 2\ns_and_b32 s10, s{sTI}, 1\ns_add_u32 s9, s9, s10\ns_lshl_b32 s9, s9, 5\ns_add_u32 s9, s9, {FL_H}')
        s.sspin(f's_buffer_load_dwordx8 s[16:23], s[{rWS}:{rWS+3}], s9 glc',range(16,24),1); s.stamp(4)
    else:
        g(f's_lshr_b32 s9, s{sTI}, 1\ns_lshl_b32 s9, s9, 7\ns_add_u32 s9, s9, {FL_H}\nv_lshrrev_b32 v20, 2, v0\nv_lshl_add_u32 v33, v20, 2, s9\nv_mov_b32 v34, {L_SY+8}\ns_mov_b64 {M}, 0')
        nq=3*o.ht
        g(f's_mul_i32 s9, s{sTI}, 196608\ns_and_b32 s10, s{sDJ}, {8//max(o.ht,1)-1}\ns_mul_i32 s10, s10, {512*nq}\ns_add_u32 s9, s9, s10\nv_mul_u32_u24 v20, 12288, v20\nv_and_b32 v21, 3, v0\nv_lshl_add_u32 v20, v21, 7, v20')
        g('s_mov_b32 s15, 0'); g.lab('HP'); g(f'buffer_load_dword v32, v33, s[{rWS}:{rWS+3}], 0 offen sc1\ns_waitcnt vmcnt(0)\nv_cmp_eq_u32 vcc, 1, v32\ns_add_u32 s15, s15, 1\ns_nop 0')
        g(f'v_mov_b32 v36, vcc_lo\nv_mov_b32 v37, vcc_hi\ns_andn2_b64 s[10:11], vcc, {M}\ns_cbranch_scc0 HN\nds_write_b64 v34, v[36:37]\ns_mov_b64 {M}, vcc')
        if nq:
            g('s_mov_b64 exec, s[10:11]')
            for q in range(nq): g(f'buffer_load_dword v{40+q}, v20, s[{rWS}:{rWS+3}], s9 offen offset:{512*q} sc1')
            g('s_mov_b64 exec, -1')
        g.lab('HN'); g(f's_cmp_gt_u32 s15, {SPIN}\ns_cbranch_scc1 HQ\ns_cmp_eq_u64 vcc, -1\ns_cbranch_scc0 HP'); g.lab('HQ')
        g(f'v_mov_b32 v36, -1\nv_mov_b32 v37, -1\nds_write_b64 v34, v[36:37]'); s.stamp(4)
    g(f's_lshl_b32 s9, s{sTI}, 8\ns_add_u32 s9, s9, {WS_G}\ns_mov_b32 m0, {L_G}\nv_lshlrev_b32 v20, 2, v0\nbuffer_load_dword v20, s[{rWS}:{rWS+3}], s9 offen sc1 lds')
    g(f's_mul_i32 s9, s{sDJ}, 640\ns_add_u32 s9, s9, {FL_Y}\nv_lshrrev_b32 v20, 3, v0\nv_and_b32 v21, 7, v0\nv_lshlrev_b32 v22, 3, v21\nv_lshl_add_u32 v22, v20, 7, v22\nv_add_u32 v33, s9, v22')
    g(f'v_mul_u32_u24 v20, {ROWS}, v20\nv_lshl_add_u32 v20, v21, 4, v20\ns_mul_i32 s9, s{sDJ}, {80*ROWS}\ns_lshl_b32 s10, s{sTI}, 7\ns_add_u32 s9, s9, s10')
    if o.sp:
        if o.sp>=2 and o.yn: s.lspin(34,35,L_SY+8,o.yn)
        g(f's_mul_i32 s10, s{sDJ}, 640\ns_add_u32 s10, s10, {FL_Y}')
        s.sspin('\n'.join(f's_buffer_load_dwordx2 s[{16+2*k}:{17+2*k}], s[{rWS}:{rWS+3}], s10 offset:{64*k} glc' for k in range(10)) if o.yl==2 else f's_buffer_load_dwordx16 s[16:31], s[{rWS}:{rWS+3}], s10 glc\ns_buffer_load_dwordx4 s[32:35], s[{rWS}:{rWS+3}], s10 offset:64 glc' if o.yl else '\n'.join(f's_buffer_load_dwordx4 s[{16+4*k}:{19+4*k}], s[{rWS}:{rWS+3}], s10 offset:{128*k} glc' for k in range(5)),range(16,36),0x01010101,'ds_read_b32 v35, v34\ns_waitcnt lgkmcnt(0)\n'*o.yp)
    else:
        g(f's_mov_b32 s{sKS}, -1\ns_mov_b32 s{sKS+1}, 0xff\ns_mov_b64 exec, {M}')
        s.spin(f'buffer_load_dwordx2 v[36:37], v33, s[{rWS}:{rWS+3}], 0 offen sc1','v_and_b32 v36, v36, v37\nv_cmp_eq_u32 vcc, 1, v36',M)
    g('s_mov_b64 exec, -1'); s.stamp(5)
    for q in range(10):
        g(f's_mov_b32 m0, {L_KS+4608+(q>>2)*8704+(q&3)*1024}\ns_add_u32 s10, s9, {WS_YT+8*q*ROWS}\nbuffer_load_dwordx4 v20, s[{rWS}:{rWS+3}], s10 offen sc1 lds')
    g('s_waitcnt vmcnt(0)'); s.stamp(6); g('s_barrier'); s.dump_stamps((7,[(k,8+k) for k in range(1,7)])); g('s_endpgm')
def warm(s,k):
    g=s.g
    if k==0: g(f's_lshl_b32 s9, s{sDJ}, 2\ns_and_b32 s10, s{sTI}, 3\ns_add_u32 s9, s9, s10\ns_mul_i32 s9, s9, 61440\ns_add_u32 s9, s9, {WS_WP}\nv_lshl_add_u32 v37, v0, 7, s9')
    for q in range(s.o.wn):
        if k*s.o.wn+q==7: g('v_subrev_u32 v37, 4096, v37')
        assert s.o.warm>s.o.ufv and s.o.pkv<0
        g.vmem(f'buffer_atomic_or v31, v37, s[{rWS}:{rWS+3}], 0 offen' if s.o.wat else f'buffer_load_dword v{40+q}, v37, s[{rWS}:{rWS+3}], 0 offen sc1','wm'); g('v_add_u32 v37, 8192, v37')
```
